```python
import torch

def _softmax(x, axis=-1):
    return torch.softmax(x, dim=axis)
def _gelu(x):
    return torch.nn.functional.gelu(x, approximate="tanh")
def _silu(x):
    return torch.nn.functional.silu(x)
def _sigmoid(x):
    return torch.sigmoid(x)
def _layernorm(x, axis=-1, eps=1e-5):
    m = x.mean(dim=axis, keepdim=True)
    v = x.var(dim=axis, keepdim=True, unbiased=False)
    return (x - m) / torch.sqrt(v + eps)
def _scatter_add(tgt, idx, src, axis=0):
    return tgt.clone().index_add_(axis, idx, src)
def _segment_sum(src, seg, n):
    out = torch.zeros((n,) + src.shape[1:], dtype=src.dtype)
    return out.index_add_(0, seg, src)
def _pad(x, pw):
    flat = tuple(v for pair in reversed(pw) for v in pair)
    return torch.nn.functional.pad(x, flat)

kernel_name = 'interleave_layers__linear_kernel_hedgehog__softmax_full_mha__prompt'

def setup_inputs():

    _w = (lambda a: (lambda t: t.to(torch.bfloat16) if t.is_floating_point() else t)(torch.as_tensor(a)))
    def _A_setup():
        B, S, D, H = 1, 2048, 576, 32
        Dh = D // H
        return {
            "x": _w((lambda *s: torch.randn(*s, dtype=torch.bfloat16) * 0.05)(B, S, D)),
            "wqkv": _w((lambda *s: torch.randn(*s, dtype=torch.bfloat16) * 0.4)(D, 3 * D)),
            "w_phi": _w((lambda *s: torch.randn(*s, dtype=torch.bfloat16) * 0.4)(H, Dh, Dh) * (Dh ** -0.5)),
            "wo": _w((lambda *s: torch.randn(*s, dtype=torch.bfloat16) * 0.05)(D, D)),
        }
    _A_in = _A_setup()

    def _B_setup():
        B, S, D = 1, 2048, 576
        return {
            "x": _w((lambda *s: torch.randn(*s, dtype=torch.bfloat16) * 0.05)(B, S, D)),
            "wqkv": _w((lambda *s: torch.randn(*s, dtype=torch.bfloat16) * 0.1)(D, 3 * D)),
            "wo": _w((lambda *s: torch.randn(*s, dtype=torch.bfloat16) * 0.05)(D, D)),
        }
    _B_in = _B_setup()

    return {
        "A_x": _A_in["x"],
        "A_wqkv": _A_in["wqkv"],
        "A_w_phi": _A_in["w_phi"],
        "A_wo": _A_in["wo"],
        "B_x": _B_in["x"],
        "B_wqkv": _B_in["wqkv"],
        "B_wo": _B_in["wo"],
    }

def reference(A_x, A_wqkv, A_w_phi, A_wo, B_x, B_wqkv, B_wo):
    def _A_ref(x, wqkv, w_phi, wo):
        B, S, D = x.shape
        H = 32; Dh = D // H
        qkv = (lambda x, *d: x.permute(*d))((x @ wqkv).reshape(B, S, 3, H, Dh), 2, 0, 3, 1, 4)
        q, k, v = qkv[0], qkv[1], qkv[2]
        pq = torch.einsum("bhsd,hdf->bhsf", q, w_phi)
        pk = torch.einsum("bhsd,hdf->bhsf", k, w_phi)
        phi_q = torch.concatenate([_softmax(pq, axis=-1), _softmax(-pq, axis=-1)], axis=-1)
        phi_k = torch.concatenate([_softmax(pk, axis=-1), _softmax(-pk, axis=-1)], axis=-1)
        kv = torch.einsum("bhsf,bhsd->bhfd", phi_k, v)
        z  = torch.einsum("bhsf->bhf", phi_k)
        num = torch.einsum("bhqf,bhfd->bhqd", phi_q, kv)
        den = torch.einsum("bhqf,bhf->bhq", phi_q, z)[..., None] + 1e-6
        o = num / den
        return (lambda x, *d: x.permute(*d))(o, 0, 2, 1, 3).reshape(B, S, D) @ wo

    def _B_ref(x, wqkv, wo):
        B, S, D = x.shape
        H = 32; Dh = D // H
        qkv = (lambda x, *d: x.permute(*d))((x @ wqkv).reshape(B, S, 3, H, Dh), 2, 0, 3, 1, 4)
        q, k, v = qkv[0], qkv[1], qkv[2]
        scale = Dh ** -0.5
        scores = torch.einsum("bhqd,bhkd->bhqk", q, k) * scale
        p = _softmax(scores, axis=-1)
        o = torch.einsum("bhqk,bhkd->bhqd", p, v)
        return (lambda x, *d: x.permute(*d))(o, 0, 2, 1, 3).reshape(B, S, D) @ wo

    x = A_x
    x = x + _A_ref(_layernorm(x, axis=-1), A_wqkv, A_w_phi, A_wo)
    x = x + _B_ref(_layernorm(x, axis=-1), B_wqkv, B_wo)
    x = x + _A_ref(_layernorm(x, axis=-1), A_wqkv, A_w_phi, A_wo)
    x = x + _B_ref(_layernorm(x, axis=-1), B_wqkv, B_wo)
    return x
```

```python
import sys

S, D, H, DH = 2048, 576, 32, 18
N3 = 3 * D
KA = dict(A_x=0, A_wqkv=8, A_wphi=16, A_wo=24, B_x=32, B_wqkv=40, B_wo=48, out=56, dbg=64, ws=72)
XB = S * D * 2
WS_XN = 0
WS_QKV = WS_XN + XB
WS_O = WS_QKV + S * N3 * 2
WS_X1 = WS_O + XB
WS_X2 = WS_X1 + XB
WS_X3 = WS_X2 + XB
WS_KV = WS_X3 + XB
WS_END = WS_KV + H * 8 * 8192


class Kern:
    def __init__(self, name, block, grid, lds=0):
        self.name, self.block, self.grid, self.lds = name, block, grid, lds
        self.L = []
        self.nv = 0
        self.ns = 102

    def i(self, s):
        self.L.append("    " + s)

    def lab(self, s):
        self.L.append(f"{self.name}_{s}:")

    def ref(self, s):
        return f"{self.name}_{s}"

    def valloc(self, n, align=1):
        b = (self.nv + align - 1) // align * align
        self.nv = b + n
        assert self.nv <= 512
        return b

    def text(self):
        nv = max(self.nv, 1)
        acc = (nv + 3) // 4 * 4
        o = [f".globl {self.name}", ".p2align 8", f".type {self.name},@function", f"{self.name}:"]
        o += self.L
        return "\n".join(o) + "\n"

    def desc(self):
        nv = max(self.nv, 1)
        acc = (nv + 3) // 4 * 4
        if getattr(self, "na", 0):
            nv = acc + self.na
        return (f".amdhsa_kernel {self.name}\n"
                f"  .amdhsa_next_free_vgpr {nv}\n"
                f"  .amdhsa_next_free_sgpr {self.ns}\n"
                f"  .amdhsa_accum_offset {acc}\n"
                f"  .amdhsa_group_segment_fixed_size 0\n"
                f"  .amdhsa_kernarg_size 80\n"
                f"  .amdhsa_user_sgpr_count 2\n"
                f"  .amdhsa_user_sgpr_kernarg_segment_ptr 1\n"
                f"  .amdhsa_system_sgpr_workgroup_id_x 1\n"
                f".end_amdhsa_kernel\n")

    def load_ptr(self, sdst, src):
        if isinstance(src, str):
            self.i(f"s_load_dwordx2 s[{sdst}:{sdst+1}], s[0:1], {KA[src]}")
        else:
            self.i(f"s_load_dwordx2 s[{sdst}:{sdst+1}], s[0:1], {KA['ws']}")

    def fix_ptr(self, sdst, src):
        if not isinstance(src, str):
            off = src[1]
            if off:
                self.i(f"s_add_u32 s{sdst}, s{sdst}, 0x{off:x}")
                self.i(f"s_addc_u32 s{sdst+1}, s{sdst+1}, 0")

    def srd(self, sd, sp, nbytes):
        self.i(f"s_mov_b32 s{sd}, s{sp}")
        self.i(f"s_and_b32 s{sd+1}, s{sp+1}, 0xffff")
        self.i(f"s_mov_b32 s{sd+2}, 0x{nbytes:x}")
        self.i(f"s_mov_b32 s{sd+3}, 0x20000")


def src_bytes(src):
    return XB


def gen_ln(name, src, dst):
    k = Kern(name, 256, S // 8)
    k.load_ptr(4, src)
    k.load_ptr(6, dst)
    k.i(f"s_cmp_ge_u32 s2, {S // 8}")
    k.i(f"s_cbranch_scc1 {k.ref('done')}")
    k.i("s_waitcnt lgkmcnt(0)")
    k.fix_ptr(4, src)
    k.fix_ptr(6, dst)
    k.srd(8, 4, XB)
    k.srd(12, 6, XB)
    k.nv = 1
    vt = k.valloc(1)
    voff = k.valloc(1)
    vraw = k.valloc(9, 4)
    vx = k.valloc(18)
    vs = k.valloc(1)
    vt2 = k.valloc(1)
    vmean = k.valloc(1)
    vr = k.valloc(1)
    k.i(f"s_lshl_b32 s3, s2, 8")
    k.i(f"v_add_u32 v{vt}, s3, v0")
    k.i(f"v_lshrrev_b32 v{voff}, 5, v{vt}")
    k.i(f"v_mul_u32_u24 v{voff}, 1152, v{voff}")
    k.i(f"v_and_b32 v{vt}, 31, v{vt}")
    k.i(f"v_mul_u32_u24 v{vt}, 36, v{vt}")
    k.i(f"v_add_u32 v{voff}, v{voff}, v{vt}")
    k.i(f"buffer_load_dwordx4 v[{vraw}:{vraw+3}], v{voff}, s[8:11], 0 offen")
    k.i(f"buffer_load_dwordx4 v[{vraw+4}:{vraw+7}], v{voff}, s[8:11], 0 offen offset:16")
    k.i(f"buffer_load_dword v{vraw+8}, v{voff}, s[8:11], 0 offen offset:32")
    k.i("s_waitcnt vmcnt(0)")
    for j in range(9):
        k.i(f"v_lshlrev_b32 v{vx+2*j}, 16, v{vraw+j}")
        k.i(f"v_and_b32 v{vx+2*j+1}, 0xffff0000, v{vraw+j}")

    def reduce32(v):
        for off in (0x041F, 0x081F, 0x101F, 0x201F, 0x401F):
            k.i(f"ds_swizzle_b32 v{vt2}, v{v} offset:0x{off:x}")
            k.i("s_waitcnt lgkmcnt(0)")
            k.i(f"v_add_f32 v{v}, v{v}, v{vt2}")

    k.i(f"v_add_f32 v{vs}, v{vx}, v{vx+1}")
    for j in range(2, 18):
        k.i(f"v_add_f32 v{vs}, v{vs}, v{vx+j}")
    reduce32(vs)
    k.i(f"v_mul_f32 v{vmean}, 0x{f2u(1.0/576):x}, v{vs}")
    for j in range(18):
        k.i(f"v_sub_f32 v{vx+j}, v{vx+j}, v{vmean}")
    k.i(f"v_mul_f32 v{vs}, v{vx}, v{vx}")
    for j in range(1, 18):
        k.i(f"v_fmac_f32 v{vs}, v{vx+j}, v{vx+j}")
    reduce32(vs)
    k.i(f"v_mov_b32 v{vr}, 0x{f2u(1e-5):x}")
    k.i(f"v_fmac_f32 v{vr}, 0x{f2u(1.0/576):x}, v{vs}")
    k.i(f"v_rsq_f32 v{vr}, v{vr}")
    k.i("s_nop 0")
    for j in range(18):
        k.i(f"v_mul_f32 v{vx+j}, v{vx+j}, v{vr}")
    for j in range(9):
        k.i(f"v_cvt_pk_bf16_f32 v{vraw+j}, v{vx+2*j}, v{vx+2*j+1}")
    k.i(f"buffer_store_dwordx4 v[{vraw}:{vraw+3}], v{voff}, s[12:15], 0 offen")
    k.i(f"buffer_store_dwordx4 v[{vraw+4}:{vraw+7}], v{voff}, s[12:15], 0 offen offset:16")
    k.i(f"buffer_store_dword v{vraw+8}, v{voff}, s[12:15], 0 offen offset:32")
    k.lab("done")
    k.i("s_endpgm")
    return k


def f2u(x):
    import struct
    return struct.unpack("<I", struct.pack("<f", x))[0]


XSTR = 144
WSTR = 192
XBYTES = 128 * XSTR
WBYTES = 64 * WSTR
BUFB = XBYTES + WBYTES


def magic_div(k, sdst, ssrc, d, stmp):
    m = (2**32 + d - 1) // d
    k.i(f"s_mov_b32 s{stmp}, 0x{m:x}")
    k.i(f"s_mul_hi_u32 s{sdst}, s{ssrc}, s{stmp}")


def gen_gemm(name, asrc, wslot, N, cdst, res=None):
    ntn = N // 64
    nwg = (S // 128) * ntn
    k = Kern(name, 256, nwg, lds=2 * BUFB)
    k.load_ptr(4, asrc)
    k.i(f"s_load_dwordx2 s[6:7], s[0:1], {KA[wslot]}")
    k.load_ptr(8, cdst)
    if res is not None:
        k.load_ptr(10, res)
    k.i(f"s_cmp_ge_u32 s2, {nwg}")
    k.i(f"s_cbranch_scc1 {k.ref('done')}")
    k.i("s_waitcnt lgkmcnt(0)")
    k.fix_ptr(4, asrc)
    k.fix_ptr(8, cdst)
    if res is not None:
        k.fix_ptr(10, res)
    k.srd(12, 4, XB)
    k.srd(16, 6, D * N * 2)
    cbytes = S * N * 2
    k.srd(20, 8, cbytes)
    if res is not None:
        k.srd(24, 10, XB)
    magic_div(k, 28, 2, ntn, 30)
    k.i(f"s_mul_i32 s30, s28, {ntn}")
    k.i("s_sub_u32 s29, s2, s30")
    k.nv = 1
    vga = k.valloc(1)
    vgw = k.valloc(1)
    vla = k.valloc(1)
    vlw = k.valloc(1)
    vxr = k.valloc(1)
    vwr = k.valloc(1)
    vt = k.valloc(1)
    vt2 = k.valloc(1)
    sa = k.valloc(16, 4)
    sw = k.valloc(8, 4)
    xf = k.valloc(16, 4)
    wf = k.valloc(32, 4)
    acc = k.valloc(32, 4)
    k.i(f"s_lshl_b32 s30, s28, 7")
    k.i(f"v_lshrrev_b32 v{vt}, 1, v0")
    k.i(f"v_add_u32 v{vt2}, s30, v{vt}")
    k.i(f"v_mul_u32_u24 v{vga}, 1152, v{vt2}")
    k.i(f"v_and_b32 v{vt2}, 1, v0")
    k.i(f"v_lshlrev_b32 v{vt2}, 6, v{vt2}")
    k.i(f"v_add_u32 v{vga}, v{vga}, v{vt2}")
    k.i(f"v_mul_u32_u24 v{vla}, {XSTR}, v{vt}")
    k.i(f"v_add_u32 v{vla}, v{vla}, v{vt2}")
    k.i(f"v_lshrrev_b32 v{vt}, 2, v0")
    k.i(f"v_mul_u32_u24 v{vgw}, {N*2}, v{vt}")
    k.i(f"v_and_b32 v{vt2}, 3, v0")
    k.i(f"v_lshlrev_b32 v{vt2}, 5, v{vt2}")
    k.i(f"v_add_u32 v{vgw}, v{vgw}, v{vt2}")
    k.i(f"s_lshl_b32 s31, s29, 7")
    k.i(f"v_add_u32 v{vgw}, s31, v{vgw}")
    k.i(f"v_mul_u32_u24 v{vlw}, {WSTR}, v{vt}")
    k.i(f"v_add_u32 v{vlw}, v{vlw}, v{vt2}")
    k.i(f"v_add_u32 v{vlw}, {XBYTES}, v{vlw}")
    k.i(f"v_lshrrev_b32 v{vt}, 6, v0")
    k.i(f"v_lshlrev_b32 v{vt}, 5, v{vt}")
    k.i(f"v_and_b32 v{vt2}, 31, v0")
    k.i(f"v_add_u32 v{vt}, v{vt}, v{vt2}")
    k.i(f"v_mul_u32_u24 v{vxr}, {XSTR}, v{vt}")
    k.i(f"v_bfe_u32 v{vt2}, v0, 5, 1")
    k.i(f"v_lshlrev_b32 v{vt2}, 4, v{vt2}")
    k.i(f"v_add_u32 v{vxr}, v{vxr}, v{vt2}")
    k.i(f"v_bfe_u32 v{vt}, v0, 5, 1")
    k.i(f"v_lshlrev_b32 v{vt}, 3, v{vt}")
    k.i(f"v_bfe_u32 v{vt2}, v0, 2, 2")
    k.i(f"v_add_u32 v{vt}, v{vt}, v{vt2}")
    k.i(f"v_mul_u32_u24 v{vwr}, {WSTR}, v{vt}")
    k.i(f"v_bfe_u32 v{vt}, v0, 4, 1")
    k.i(f"v_lshlrev_b32 v{vt}, 5, v{vt}")
    k.i(f"v_and_b32 v{vt2}, 3, v0")
    k.i(f"v_lshlrev_b32 v{vt2}, 3, v{vt2}")
    k.i(f"v_add3_u32 v{vwr}, v{vwr}, v{vt}, v{vt2}")
    k.i(f"v_add_u32 v{vwr}, {XBYTES}, v{vwr}")
    for r in range(32):
        k.i(f"v_mov_b32 v{acc+r}, 0")

    def gload(kc):
        for j in range(4):
            k.i(f"buffer_load_dwordx4 v[{sa+4*j}:{sa+4*j+3}], v{vga}, s[12:15], 0 offen offset:{kc*128+j*16}")
        for j in range(2):
            k.i(f"buffer_load_dwordx4 v[{sw+4*j}:{sw+4*j+3}], v{vgw}, s[16:19], s32 offen offset:{j*16}")

    k.i("s_mov_b32 s32, 0")
    gload(0)
    for kc in range(9):
        b = (kc & 1) * BUFB
        k.i("s_waitcnt vmcnt(0)")
        for j in range(4):
            k.i(f"ds_write_b128 v{vla}, v[{sa+4*j}:{sa+4*j+3}] offset:{b+j*16}")
        for j in range(2):
            k.i(f"ds_write_b128 v{vlw}, v[{sw+4*j}:{sw+4*j+3}] offset:{b+j*16}")
        k.i("s_waitcnt lgkmcnt(0)")
        k.i("s_barrier")
        if kc < 8:
            k.i(f"s_mov_b32 s32, 0x{(kc+1)*64*N*2:x}")
            gload(kc + 1)
        for ks in range(4):
            k.i(f"ds_read_b128 v[{xf+4*ks}:{xf+4*ks+3}], v{vxr} offset:{b+ks*32}")
            for nt in range(2):
                for j in range(2):
                    base = wf + 8 * ks + 4 * nt + 2 * j
                    off = b + (ks * 16 + 4 * j) * WSTR + nt * 64
                    k.i(f"ds_read_b64_tr_b16 v[{base}:{base+1}], v{vwr} offset:{off}")
        for ks in range(4):
            k.i(f"s_waitcnt lgkmcnt({15 - 5*ks})")
            for nt in range(2):
                a = wf + 8 * ks + 4 * nt
                k.i(f"v_mfma_f32_32x32x16_bf16 v[{acc+16*nt}:{acc+16*nt+15}], v[{a}:{a+3}], v[{xf+4*ks}:{xf+4*ks+3}], v[{acc+16*nt}:{acc+16*nt+15}]")
    k.i("s_nop 7")
    k.i("s_nop 7")
    k.i(f"v_lshrrev_b32 v{vt}, 6, v0")
    k.i(f"v_lshlrev_b32 v{vt}, 5, v{vt}")
    k.i(f"v_and_b32 v{vt2}, 31, v0")
    k.i(f"v_add3_u32 v{vt}, v{vt}, v{vt2}, s30")
    k.i(f"v_mul_u32_u24 v{vga}, {N*2}, v{vt}")
    k.i(f"v_bfe_u32 v{vt2}, v0, 5, 1")
    k.i(f"v_lshlrev_b32 v{vt2}, 3, v{vt2}")
    k.i(f"v_add3_u32 v{vga}, v{vga}, v{vt2}, s31")
    pk = wf
    if res is None:
        for nt in range(2):
            for g in range(4):
                a = acc + 16 * nt + 4 * g
                p = pk + 2 * (4 * nt + g)
                k.i(f"v_cvt_pk_bf16_f32 v{p}, v{a}, v{a+1}")
                k.i(f"v_cvt_pk_bf16_f32 v{p+1}, v{a+2}, v{a+3}")
                k.i(f"buffer_store_dwordx2 v[{p}:{p+1}], v{vga}, s[20:23], 0 offen offset:{nt*64+g*16}")
    else:
        rr = xf
        for nt in range(2):
            for g in range(4):
                p = rr + 2 * (4 * nt + g)
                k.i(f"buffer_load_dwordx2 v[{p}:{p+1}], v{vga}, s[24:27], 0 offen offset:{nt*64+g*16}")
        k.i("s_waitcnt vmcnt(0)")
        for nt in range(2):
            for g in range(4):
                a = acc + 16 * nt + 4 * g
                p = pk + 2 * (4 * nt + g)
                r_ = rr + 2 * (4 * nt + g)
                for h in range(2):
                    k.i(f"v_cvt_pk_bf16_f32 v{p+h}, v{a+2*h}, v{a+2*h+1}")
                    k.i(f"v_lshlrev_b32 v{a+2*h}, 16, v{p+h}")
                    k.i(f"v_and_b32 v{a+2*h+1}, 0xffff0000, v{p+h}")
                    k.i(f"v_lshlrev_b32 v{vt}, 16, v{r_+h}")
                    k.i(f"v_and_b32 v{vt2}, 0xffff0000, v{r_+h}")
                    k.i(f"v_add_f32 v{a+2*h}, v{a+2*h}, v{vt}")
                    k.i(f"v_add_f32 v{a+2*h+1}, v{a+2*h+1}, v{vt2}")
                    k.i(f"v_cvt_pk_bf16_f32 v{p+h}, v{a+2*h}, v{a+2*h+1}")
                k.i(f"buffer_store_dwordx2 v[{p}:{p+1}], v{vga}, s[20:23], 0 offen offset:{nt*64+g*16}")
    k.lab("done")
    k.i("s_endpgm")
    return k


def emit(kernels, order, path):
    hdr = []
    for name in order:
        kk = kernels[name]
        hdr.append(f"; @launch kernel={kk.name} grid=({kk.grid},1,1) block=({kk.block},1,1) lds={kk.lds}")
    txt = "\n".join(hdr) + "\n"
    txt += '.amdgcn_target "amdgcn-amd-amdhsa--gfx950"\n.text\n'
    for kk in kernels.values():
        txt += kk.text()
    txt += '.section .rodata,"a"\n.p2align 6\n'
    for kk in kernels.values():
        txt += kk.desc()
    open(path, "w").write(txt)


if __name__ == "__main__":
    ks = {}
    ks["ln1"] = gen_ln("ln1_kernel", "A_x", ("ws", WS_XN))
    ks["qkv1"] = gen_gemm("qkva_kernel", ("ws", WS_XN), "A_wqkv", N3, ("ws", WS_QKV))
    ks["op1"] = gen_gemm("opa1_kernel", ("ws", WS_XN), "A_wo", D, ("ws", WS_X1), res="A_x")
    emit(ks, ["ln1", "qkv1", "op1"], sys.argv[1] if len(sys.argv) > 1 else "t1.s")
```

```python
from gen import *
import math

KSTR = 80
VSTR = 64
KB = 128 * KSTR
VB = 128 * VSTR
ABUF = KB + VB


def gen_attn(name):
    nwg = H * 8
    k = Kern(name, 512, nwg, lds=2 * ABUF)
    k.load_ptr(4, ("ws", WS_QKV))
    k.load_ptr(6, ("ws", WS_O))
    k.i(f"s_cmp_ge_u32 s2, {nwg}")
    k.i(f"s_cbranch_scc1 {k.ref('done')}")
    k.i("s_waitcnt lgkmcnt(0)")
    k.fix_ptr(4, ("ws", WS_QKV))
    k.fix_ptr(6, ("ws", WS_O))
    k.srd(8, 4, S * N3 * 2)
    k.srd(12, 6, XB)
    k.i("s_lshr_b32 s16, s2, 3")
    k.i("s_and_b32 s17, s2, 7")
    k.i("s_mul_i32 s18, s16, 36")
    k.nv = 1
    vt = k.valloc(1); vt2 = k.valloc(1); vt3 = k.valloc(1)
    vgk = k.valloc(1)
    vlk = k.valloc(1)
    vlv = k.valloc(1)
    vkr = k.valloc(1)
    vvr = k.valloc(1)
    vm = k.valloc(1)
    vmc = k.valloc(1)
    st = k.valloc(6, 2)
    qf = k.valloc(8, 4)
    oacc = k.valloc(16, 4)
    sacc = k.valloc(64, 4)
    pp = k.valloc(32, 4)
    kf = k.valloc(32, 4)
    vf = k.valloc(32, 4)
    k.i(f"v_lshrrev_b32 v{vt}, 2, v0")
    k.i(f"v_and_b32 v{vt2}, 3, v0")
    k.i(f"v_mul_u32_u24 v{vlk}, {KSTR}, v{vt}")
    k.i(f"v_lshlrev_b32 v{vt3}, 2, v{vt2}")
    k.i(f"v_add_u32 v{vlk}, v{vlk}, v{vt3}")
    k.i(f"v_lshlrev_b32 v{vlv}, 6, v{vt}")
    k.i(f"v_add_u32 v{vlv}, v{vlv}, v{vt3}")
    k.i(f"v_add_u32 v{vlv}, {KB}, v{vlv}")
    k.i(f"v_mov_b32 v{vm}, 0")
    k.i(f"v_mov_b32 v{vmc}, 0x3f80")
    k.i(f"v_cmp_eq_u32 vcc, 0, v{vt2}")
    k.i("s_nop 1")
    k.i(f"v_cndmask_b32 v{vmc}, v{vm}, v{vmc}, vcc")
    for b in range(2):
        k.i(f"ds_write_b32 v{vlk}, v{vm} offset:{b*ABUF+36}")
        k.i(f"ds_write_b32 v{vlv}, v{vmc} offset:{b*ABUF+36}")
    k.i(f"v_min_u32 v{vt3}, 8, v{vt3}")
    k.i(f"v_mul_u32_u24 v{vt}, {KSTR}, v{vt}")
    k.i(f"v_add_u32 v{vt}, v{vt}, v{vt3}")
    k.i(f"v_lshrrev_b32 v{vt2}, 2, v0")
    k.i(f"v_lshlrev_b32 v{vt2}, 6, v{vt2}")
    k.i(f"v_add_u32 v{vt2}, v{vt2}, v{vt3}")
    for b in range(2):
        k.i(f"ds_write_b32 v{vt}, v{vm} offset:{b*ABUF+52}")
        k.i(f"ds_write_b32 v{vt2}, v{vm} offset:{b*ABUF+KB+52}")
    k.i(f"v_lshrrev_b32 v{vt}, 2, v0")
    k.i(f"v_mul_u32_u24 v{vgk}, 3456, v{vt}")
    k.i(f"v_and_b32 v{vt2}, 3, v0")
    k.i(f"v_lshlrev_b32 v{vt2}, 2, v{vt2}")
    k.i(f"v_add3_u32 v{vgk}, v{vgk}, v{vt2}, s18")
    k.i(f"v_lshrrev_b32 v{vt}, 6, v0")
    k.i(f"v_lshlrev_b32 v{vt}, 5, v{vt}")
    k.i(f"v_and_b32 v{vt2}, 31, v0")
    k.i(f"s_lshl_b32 s19, s17, 8")
    k.i(f"v_add3_u32 v{vt}, v{vt}, v{vt2}, s19")
    k.i(f"v_mul_u32_u24 v{vt3}, 3456, v{vt}")
    k.i(f"v_bfe_u32 v{vt2}, v0, 5, 1")
    k.i(f"v_lshlrev_b32 v{vt2}, 4, v{vt2}")
    k.i(f"v_add3_u32 v{vt3}, v{vt3}, v{vt2}, s18")
    for j in range(4):
        k.i(f"buffer_load_dword v{qf+j}, v{vt3}, s[8:11], 0 offen offset:{4*j}")
    k.i(f"buffer_load_dword v{qf+4}, v{vt3}, s[8:11], 0 offen offset:32")
    for j in range(5, 8):
        k.i(f"v_mov_b32 v{qf+j}, 0")
    vgo = k.valloc(1)
    k.i(f"v_mul_u32_u24 v{vgo}, 1152, v{vt}")
    k.i(f"v_add_u32 v{vgo}, s18, v{vgo}")
    k.i(f"v_and_b32 v{vt}, 31, v0")
    k.i(f"v_mul_u32_u24 v{vkr}, {KSTR}, v{vt}")
    k.i(f"v_bfe_u32 v{vt2}, v0, 5, 1")
    k.i(f"v_lshlrev_b32 v{vt2}, 4, v{vt2}")
    k.i(f"v_add_u32 v{vkr}, v{vkr}, v{vt2}")
    k.i(f"v_bfe_u32 v{vt}, v0, 5, 1")
    k.i(f"v_lshlrev_b32 v{vt}, 2, v{vt}")
    k.i(f"v_bfe_u32 v{vt2}, v0, 2, 2")
    k.i(f"v_add_u32 v{vt}, v{vt}, v{vt2}")
    k.i(f"v_lshlrev_b32 v{vvr}, 6, v{vt}")
    k.i(f"v_bfe_u32 v{vt}, v0, 4, 1")
    k.i(f"v_lshlrev_b32 v{vt}, 5, v{vt}")
    k.i(f"v_and_b32 v{vt2}, 3, v0")
    k.i(f"v_lshlrev_b32 v{vt2}, 3, v{vt2}")
    k.i(f"v_add3_u32 v{vvr}, v{vvr}, v{vt}, v{vt2}")
    k.i(f"v_add_u32 v{vvr}, {KB}, v{vvr}")
    for r in range(16):
        k.i(f"v_mov_b32 v{oacc+r}, 0")
    k.i(f"v_mov_b32 v{vm}, 0xff800000")
    k.i("s_waitcnt vmcnt(0)")
    k.i(f"v_cmp_gt_u32 vcc, 32, v0")
    k.i(f"v_and_b32 v{vt}, 63, v0")
    k.i(f"v_cmp_gt_u32 vcc, 32, v{vt}")
    k.i("s_nop 1")
    k.i(f"v_cndmask_b32 v{qf+4}, 0, v{qf+4}, vcc")
    c = (DH ** -0.5) * math.log2(math.e)
    k.i(f"s_mov_b32 s20, 0x{f2u(c):x}")

    def gload(kt):
        k.i(f"s_mov_b32 s21, 0x{kt*128*3456:x}")
        for j, o in enumerate((1152, 1152 + 16, 1152 + 32, 2304, 2304 + 16, 2304 + 32)):
            if j % 3 == 2:
                k.i(f"buffer_load_dword v{st+j}, v{vg8}, s[8:11], s21 offen offset:{o}")
            else:
                k.i(f"buffer_load_dword v{st+j}, v{vgk}, s[8:11], s21 offen offset:{o}")

    vg8 = k.valloc(1)
    vl8k = k.valloc(1)
    vl8v = k.valloc(1)
    k.i(f"v_and_b32 v{vt}, 3, v0")
    k.i(f"v_lshlrev_b32 v{vt}, 2, v{vt}")
    k.i(f"v_sub_u32 v{vg8}, v{vgk}, v{vt}")
    k.i(f"v_sub_u32 v{vl8k}, v{vlk}, v{vt}")
    k.i(f"v_sub_u32 v{vl8v}, v{vlv}, v{vt}")
    gload(0)
    for kt in range(16):
        b = (kt & 1) * ABUF
        k.i("s_waitcnt vmcnt(0)")
        k.i(f"ds_write_b32 v{vlk}, v{st} offset:{b}")
        k.i(f"ds_write_b32 v{vlk}, v{st+1} offset:{b+16}")
        k.i(f"ds_write_b32 v{vl8k}, v{st+2} offset:{b+32}")
        k.i(f"ds_write_b32 v{vlv}, v{st+3} offset:{b}")
        k.i(f"ds_write_b32 v{vlv}, v{st+4} offset:{b+16}")
        k.i(f"ds_write_b32 v{vl8v}, v{st+5} offset:{b+32}")
        k.i("s_waitcnt lgkmcnt(0)")
        k.i("s_barrier")
        if kt < 15:
            gload(kt + 1)
        for sub in range(4):
            for ks in range(2):
                r = kf + 8 * sub + 4 * ks
                k.i(f"ds_read_b128 v[{r}:{r+3}], v{vkr} offset:{b + sub*32*KSTR + ks*32}")
        for sub in range(4):
            k.i(f"s_waitcnt lgkmcnt({6 - 2*sub})")
            a = sacc + 16 * sub
            r = kf + 8 * sub
            k.i(f"v_mfma_f32_32x32x16_bf16 v[{a}:{a+15}], v[{r}:{r+3}], v[{qf}:{qf+3}], 0")
            k.i(f"v_mfma_f32_32x32x16_bf16 v[{a}:{a+15}], v[{r+4}:{r+7}], v[{qf+4}:{qf+7}], v[{a}:{a+15}]")
        for g in range(8):
            for j in range(2):
                r = vf + 4 * g + 2 * j
                k.i(f"ds_read_b64_tr_b16 v[{r}:{r+1}], v{vvr} offset:{b + (g*16 + 8*j)*VSTR}")
        k.i("s_nop 7")
        k.i("s_nop 3")
        k.i(f"v_max3_f32 v{vt}, v{sacc}, v{sacc+1}, v{sacc+2}")
        for j in range(3, 63, 2):
            k.i(f"v_max3_f32 v{vt}, v{vt}, v{sacc+j}, v{sacc+j+1}")
        k.i(f"v_max_f32 v{vt}, v{vt}, v{sacc+63}")
        k.i(f"v_mov_b32 v{vt2}, v{vt}")
        k.i("s_nop 1")
        k.i(f"v_permlane32_swap_b32 v{vt}, v{vt2}")
        k.i(f"v_max3_f32 v{vt}, v{vt}, v{vt2}, v{vm}")
        k.i(f"v_sub_f32 v{vt2}, v{vm}, v{vt}")
        k.i(f"v_mul_f32 v{vt2}, s20, v{vt2}")
        k.i(f"v_exp_f32 v{vt2}, v{vt2}")
        k.i(f"v_mov_b32 v{vm}, v{vt}")
        k.i(f"v_mul_f32 v{vmc}, s20, v{vt}")
        for r in range(16):
            k.i(f"v_mul_f32 v{oacc+r}, v{oacc+r}, v{vt2}")
        for j in range(64):
            k.i(f"v_fma_f32 v{sacc+j}, v{sacc+j}, s20, -v{vmc}")
        for j in range(64):
            k.i(f"v_exp_f32 v{sacc+j}, v{sacc+j}")
        for j in range(32):
            k.i(f"v_cvt_pk_bf16_f32 v{pp+j}, v{sacc+2*j}, v{sacc+2*j+1}")
        k.i("s_waitcnt lgkmcnt(0)")
        for g in range(8):
            r = vf + 4 * g
            p = pp + 4 * g
            k.i(f"v_mfma_f32_32x32x16_bf16 v[{oacc}:{oacc+15}], v[{r}:{r+3}], v[{p}:{p+3}], v[{oacc}:{oacc+15}]")
    k.i("s_nop 7")
    k.i("s_nop 7")
    k.i(f"v_mov_b32 v{vt}, v{oacc+10}")
    k.i(f"v_mov_b32 v{vt2}, v{oacc+10}")
    k.i("s_nop 1")
    k.i(f"v_permlane32_swap_b32 v{vt}, v{vt2}")
    k.i(f"v_rcp_f32 v{vt}, v{vt}")
    k.i("s_nop 0")
    for r in range(10):
        k.i(f"v_mul_f32 v{oacc+r}, v{oacc+r}, v{vt}")
    for r in range(0, 10, 2):
        k.i(f"v_cvt_pk_bf16_f32 v{pp+r//2}, v{oacc+r}, v{oacc+r+1}")
    k.i(f"v_bfe_u32 v{vt2}, v0, 5, 1")
    k.i(f"v_lshlrev_b32 v{vt2}, 3, v{vt2}")
    k.i(f"v_add_u32 v{vgo}, v{vgo}, v{vt2}")
    k.i(f"buffer_store_dword v{pp}, v{vgo}, s[12:15], 0 offen")
    k.i(f"buffer_store_dword v{pp+1}, v{vgo}, s[12:15], 0 offen offset:4")
    k.i(f"buffer_store_dword v{pp+2}, v{vgo}, s[12:15], 0 offen offset:16")
    k.i(f"buffer_store_dword v{pp+3}, v{vgo}, s[12:15], 0 offen offset:20")
    k.i(f"v_and_b32 v{vt}, 63, v0")
    k.i(f"v_cmp_gt_u32 vcc, 32, v{vt}")
    k.i("s_and_saveexec_b64 s[22:23], vcc")
    k.i(f"buffer_store_dword v{pp+4}, v{vgo}, s[12:15], 0 offen offset:32")
    k.i("s_mov_b64 exec, s[22:23]")
    k.lab("done")
    k.i("s_endpgm")
    return k
```

```python
from gen import *
import math
LOG2E = math.log2(math.e)


def emit_wphi_frags(k, wa, vt, vt2, vt3, sh, srd):
    tmp = wa + 8
    k.i(f"v_and_b32 v{vt}, 31, v0")
    k.i(f"v_bfe_u32 v{vt2}, v0, 5, 1")
    k.i(f"v_lshlrev_b32 v{vt2}, 3, v{vt2}")
    k.i(f"s_mul_i32 s40, s{sh}, 648")
    for half in range(2):
        for j in range(8):
            k.i(f"v_add_u32 v{vt3}, {16*half + j}, v{vt2}")
            k.i(f"v_cmp_gt_u32 vcc, 18, v{vt3}")
            k.i(f"v_mul_u32_u24 v{vt3}, 36, v{vt3}")
            k.i(f"v_lshl_add_u32 v{vt3}, v{vt}, 1, v{vt3}")
            k.i(f"v_add_u32 v{vt3}, s40, v{vt3}")
            k.i(f"s_mov_b64 s[42:43], vcc")
            k.i(f"v_cmp_gt_u32 vcc, 18, v{vt}")
            k.i(f"s_and_b64 vcc, vcc, s[42:43]")
            k.i("s_nop 1")
            k.i(f"v_cndmask_b32 v{vt3}, -16, v{vt3}, vcc")
            k.i(f"buffer_load_ushort v{tmp+8*half+j}, v{vt3}, s[{srd}:{srd+3}], 0 offen")
    k.i("s_waitcnt vmcnt(0)")
    for half in range(2):
        for j in range(4):
            k.i(f"v_lshl_or_b32 v{wa+4*half+j}, v{tmp+8*half+2*j+1}, 16, v{tmp+8*half+2*j}")


def emit_dual_softmax(k, pk, ep, em, vt, vt2, vt3, vmask_lo):
    k.i(f"v_cndmask_b32 v{ep}, v{pk}, v{pk+8}, s[{vmask_lo}:{vmask_lo+1}]")
    k.i(f"v_cndmask_b32 v{ep+1}, v{pk}, v{pk+9}, s[{vmask_lo}:{vmask_lo+1}]")
    k.i(f"v_max3_f32 v{vt}, v{ep}, v{ep+1}, v{pk}")
    k.i(f"v_min3_f32 v{vt2}, v{ep}, v{ep+1}, v{pk}")
    for r in range(1, 8, 2):
        if r + 1 < 8:
            k.i(f"v_max3_f32 v{vt}, v{vt}, v{pk+r}, v{pk+r+1}")
            k.i(f"v_min3_f32 v{vt2}, v{vt2}, v{pk+r}, v{pk+r+1}")
        else:
            k.i(f"v_max_f32 v{vt}, v{vt}, v{pk+r}")
            k.i(f"v_min_f32 v{vt2}, v{vt2}, v{pk+r}")
    k.i(f"v_mov_b32 v{ep}, v{vt}")
    k.i(f"v_mov_b32 v{ep+1}, v{vt2}")
    k.i("s_nop 1")
    k.i(f"v_permlane32_swap_b32 v{vt}, v{ep}")
    k.i(f"v_permlane32_swap_b32 v{vt2}, v{ep+1}")
    k.i(f"v_max_f32 v{vt}, v{vt}, v{ep}")
    k.i(f"v_min_f32 v{vt2}, v{vt2}, v{ep+1}")
    k.i(f"s_mov_b32 s44, 0x{f2u(LOG2E):x}")
    for r in range(10):
        k.i(f"v_sub_f32 v{ep+r}, v{pk+r}, v{vt}")
        k.i(f"v_sub_f32 v{em+r}, v{vt2}, v{pk+r}")
        k.i(f"v_mul_f32 v{ep+r}, s44, v{ep+r}")
        k.i(f"v_mul_f32 v{em+r}, s44, v{em+r}")
        k.i(f"v_exp_f32 v{ep+r}, v{ep+r}")
        k.i(f"v_exp_f32 v{em+r}, v{em+r}")
    k.i("s_nop 0")
    for r in (8, 9):
        k.i(f"v_cndmask_b32 v{ep+r}, 0, v{ep+r}, s[{vmask_lo}:{vmask_lo+1}]")
        k.i(f"v_cndmask_b32 v{em+r}, 0, v{em+r}, s[{vmask_lo}:{vmask_lo+1}]")
    k.i(f"v_add_f32 v{vt}, v{ep}, v{ep+1}")
    k.i(f"v_add_f32 v{vt2}, v{em}, v{em+1}")
    for r in range(2, 10):
        k.i(f"v_add_f32 v{vt}, v{vt}, v{ep+r}")
        k.i(f"v_add_f32 v{vt2}, v{vt2}, v{em+r}")
    k.i(f"v_mov_b32 v{vt3}, v{vt}")
    k.i(f"v_mov_b32 v{pk}, v{vt2}")
    k.i("s_nop 1")
    k.i(f"v_permlane32_swap_b32 v{vt}, v{vt3}")
    k.i(f"v_permlane32_swap_b32 v{vt2}, v{pk}")
    k.i(f"v_add_f32 v{vt}, v{vt}, v{vt3}")
    k.i(f"v_add_f32 v{vt2}, v{vt2}, v{pk}")
    k.i(f"v_rcp_f32 v{vt}, v{vt}")
    k.i(f"v_rcp_f32 v{vt2}, v{vt2}")
    k.i("s_nop 0")
    for r in range(10):
        k.i(f"v_mul_f32 v{ep+r}, v{ep+r}, v{vt}")
        k.i(f"v_mul_f32 v{em+r}, v{em+r}, v{vt2}")


PSTR = 192
PHB = 32 * PSTR
VTB = 32 * 64
WVB = PHB + VTB


def gen_kvred(name):
    k = Kern(name, 512, H, lds=8 * WVB)
    k.load_ptr(4, ("ws", WS_QKV))
    k.i(f"s_load_dwordx2 s[6:7], s[0:1], {KA['A_wphi']}")
    k.load_ptr(8, ("ws", WS_KV))
    k.i(f"s_cmp_ge_u32 s2, {H}")
    k.i(f"s_cbranch_scc1 {k.ref('done')}")
    k.i("s_waitcnt lgkmcnt(0)")
    k.fix_ptr(4, ("ws", WS_QKV))
    k.fix_ptr(8, ("ws", WS_KV))
    k.srd(12, 4, S * N3 * 2)
    k.srd(16, 6, H * 648)
    k.srd(20, 8, H * 4096)
    k.i("s_mul_i32 s18, s2, 36")
    k.i("s_mul_i32 s24, s2, 36")
    k.srd(16, 6, H * 648)
    k.nv = 1
    vt = k.valloc(1); vt2 = k.valloc(1); vt3 = k.valloc(1)
    vgk = k.valloc(1); vlb = k.valloc(1); vlp = k.valloc(1); vpr = k.valloc(1); vvr = k.valloc(1); vlv = k.valloc(1)
    wa = k.valloc(24, 4)
    kb = k.valloc(8, 4)
    vs = k.valloc(8, 4)
    pk = k.valloc(16, 4)
    ep = k.valloc(10, 2); em = k.valloc(10, 2)
    af = k.valloc(8, 4); bfv = k.valloc(4, 4)
    acc = k.valloc(32, 4)
    emit_wphi_frags(k, wa, vt, vt2, vt3, 2, 16)
    k.i(f"v_and_b32 v{vt}, 63, v0")
    k.i(f"v_cmp_gt_u32 s[26:27], 32, v{vt}")
    k.i(f"v_lshrrev_b32 v{vlb}, 6, v0")
    k.i(f"v_mul_u32_u24 v{vlb}, {WVB}, v{vlb}")
    k.i(f"v_mov_b32 v{pk}, 0"); k.i(f"v_mov_b32 v{pk+1}, 0"); k.i(f"v_mov_b32 v{pk+2}, 0"); k.i(f"v_mov_b32 v{pk+3}, 0")
    k.i(f"v_lshlrev_b32 v{vt2}, 4, v{vt}")
    k.i(f"v_add_u32 v{vt2}, v{vt2}, v{vlb}")
    for j in range(8):
        k.i(f"ds_write_b128 v{vt2}, v[{pk}:{pk+3}] offset:{j*1024}")
    k.i("s_waitcnt lgkmcnt(0)")
    k.i(f"v_and_b32 v{vt2}, 31, v0")
    k.i(f"v_lshlrev_b32 v{vt2}, 6, v{vt2}")
    k.i(f"v_add_u32 v{vt2}, v{vt2}, v{vlb}")
    k.i(f"v_mov_b32 v{vt3}, 0x3f80")
    k.i(f"ds_write_b32 v{vt2}, v{vt3} offset:{PHB + 36}")
    k.i(f"v_lshrrev_b32 v{vt2}, 6, v0")
    k.i(f"v_lshlrev_b32 v{vt2}, 8, v{vt2}")
    k.i(f"v_and_b32 v{vt3}, 31, v0")
    k.i(f"v_add_u32 v{vt2}, v{vt2}, v{vt3}")
    k.i(f"v_mul_u32_u24 v{vgk}, 3456, v{vt2}")
    k.i(f"v_bfe_u32 v{vt3}, v0, 5, 1")
    k.i(f"v_lshlrev_b32 v{vt3}, 4, v{vt3}")
    k.i(f"v_add3_u32 v{vgk}, v{vgk}, v{vt3}, s24")
    k.i(f"v_and_b32 v{vt2}, 31, v0")
    k.i(f"v_mul_u32_u24 v{vlp}, {PSTR}, v{vt2}")
    k.i(f"v_bfe_u32 v{vt3}, v0, 5, 1")
    k.i(f"v_lshlrev_b32 v{vt3}, 3, v{vt3}")
    k.i(f"v_add3_u32 v{vlp}, v{vlp}, v{vt3}, v{vlb}")
    k.i(f"v_lshlrev_b32 v{vlv}, 6, v{vt2}")
    k.i(f"v_lshlrev_b32 v{vt3}, 1, v{vt3}")
    k.i(f"v_add3_u32 v{vlv}, v{vlv}, v{vt3}, v{vlb}")
    k.i(f"v_bfe_u32 v{vt}, v0, 5, 1")
    k.i(f"v_lshlrev_b32 v{vt}, 3, v{vt}")
    k.i(f"v_bfe_u32 v{vt2}, v0, 2, 2")
    k.i(f"v_add_u32 v{vt}, v{vt}, v{vt2}")
    k.i(f"v_bfe_u32 v{vt2}, v0, 4, 1")
    k.i(f"v_lshlrev_b32 v{vt2}, 5, v{vt2}")
    k.i(f"v_and_b32 v{vt3}, 3, v0")
    k.i(f"v_lshlrev_b32 v{vt3}, 3, v{vt3}")
    k.i(f"v_add_u32 v{vt2}, v{vt2}, v{vt3}")
    k.i(f"v_mul_u32_u24 v{vpr}, {PSTR}, v{vt}")
    k.i(f"v_add3_u32 v{vpr}, v{vpr}, v{vt2}, v{vlb}")
    k.i(f"v_lshlrev_b32 v{vvr}, 6, v{vt}")
    k.i(f"v_add3_u32 v{vvr}, v{vvr}, v{vt2}, v{vlb}")
    for r in range(32):
        k.i(f"v_mov_b32 v{acc+r}, 0")
    for r in range(5, 8):
        k.i(f"v_mov_b32 v{kb+r}, 0")
    for g in range(8):
        so = g * 32 * 3456
        k.i(f"s_mov_b32 s28, 0x{so:x}")
        for j in range(4):
            k.i(f"buffer_load_dword v{kb+j}, v{vgk}, s[12:15], s28 offen offset:{1152+4*j}")
        k.i(f"buffer_load_dword v{kb+4}, v{vgk}, s[12:15], s28 offen offset:{1152+32}")
        for j in range(4):
            k.i(f"buffer_load_dword v{vs+j}, v{vgk}, s[12:15], s28 offen offset:{2304+4*j}")
        k.i(f"buffer_load_dword v{vs+4}, v{vgk}, s[12:15], s28 offen offset:{2304+32}")
        k.i("s_waitcnt vmcnt(0)")
        k.i(f"v_cndmask_b32 v{kb+4}, 0, v{kb+4}, s[26:27]")
        k.i(f"ds_write_b128 v{vlv}, v[{vs}:{vs+3}] offset:{PHB}")
        k.i(f"s_mov_b64 s[30:31], exec")
        k.i(f"s_mov_b64 exec, s[26:27]")
        k.i(f"ds_write_b32 v{vlv}, v{vs+4} offset:{PHB+32}")
        k.i(f"s_mov_b64 exec, s[30:31]")
        k.i("s_nop 1")
        k.i(f"v_mfma_f32_32x32x16_bf16 v[{pk}:{pk+15}], v[{wa}:{wa+3}], v[{kb}:{kb+3}], 0")
        k.i(f"v_mfma_f32_32x32x16_bf16 v[{pk}:{pk+15}], v[{wa+4}:{wa+7}], v[{kb+4}:{kb+7}], v[{pk}:{pk+15}]")
        k.i("s_nop 7"); k.i("s_nop 3")
        emit_dual_softmax(k, pk, ep, em, vt, vt2, vt3, 26)
        for ft, e in ((0, ep), (1, em)):
            for r in range(0, 10, 2):
                k.i(f"v_cvt_pk_bf16_f32 v{pk+r//2}, v{e+r}, v{e+r+1}")
            for r in range(0, 10, 2):
                fo = (8 * (r // 4) + r % 4) * 2
                k.i(f"ds_write_b32 v{vlp}, v{pk+r//2} offset:{ft*64 + fo}")
        k.i("s_waitcnt lgkmcnt(0)")
        for ks in range(2):
            for j in range(2):
                k.i(f"ds_read_b64_tr_b16 v[{bfv+2*j}:{bfv+2*j+1}], v{vvr} offset:{PHB + (ks*16+4*j)*64}")
            for ft in range(2):
                for j in range(2):
                    k.i(f"ds_read_b64_tr_b16 v[{af+4*ft+2*j}:{af+4*ft+2*j+1}], v{vpr} offset:{(ks*16+4*j)*PSTR + ft*64}")
            k.i("s_waitcnt lgkmcnt(0)")
            for ft in range(2):
                a = acc + 16 * ft
                k.i(f"v_mfma_f32_32x32x16_bf16 v[{a}:{a+15}], v[{af+4*ft}:{af+4*ft+3}], v[{bfv}:{bfv+3}], v[{a}:{a+15}]")
            k.i("s_nop 7"); k.i("s_nop 3")
    k.i("s_nop 7"); k.i("s_nop 7")
    k.i("s_barrier")
    k.i(f"v_and_b32 v{vt}, 63, v0")
    k.i(f"v_lshlrev_b32 v{vt}, 2, v{vt}")
    k.i(f"v_add_u32 v{vt2}, v{vt}, v{vlb}")
    for r in range(32):
        k.i(f"ds_write_b32 v{vt2}, v{acc+r} offset:{r*256}")
    k.i("s_waitcnt lgkmcnt(0)")
    k.i("s_barrier")
    k.i(f"v_cmp_gt_u32 vcc, 64, v0")
    k.i("s_and_saveexec_b64 s[30:31], vcc")
    k.i(f"s_cbranch_execz {k.ref('done')}")
    tmp = wa
    for r in range(32):
        for w in range(1, 8):
            k.i(f"ds_read_b32 v{tmp+w}, v{vt} offset:{w*WVB + r*256}")
        k.i("s_waitcnt lgkmcnt(0)")
        for w in range(1, 8):
            k.i(f"v_add_f32 v{acc+r}, v{acc+r}, v{tmp+w}")
    for j in range(16):
        k.i(f"v_cvt_pk_bf16_f32 v{pk+j}, v{acc+2*j}, v{acc+2*j+1}")
    k.i(f"v_lshlrev_b32 v{vt}, 4, v0")
    k.i("s_lshl_b32 s28, s2, 12")
    for q in range(4):
        k.i(f"buffer_store_dwordx4 v[{pk+4*q}:{pk+4*q+3}], v{vt}, s[20:23], s28 offen offset:{q*1024}")
    k.lab("done")
    k.i("s_endpgm")
    return k


def gen_apply(name):
    nwg = H * 16
    k = Kern(name, 256, nwg)
    k.load_ptr(4, ("ws", WS_QKV))
    k.i(f"s_load_dwordx2 s[6:7], s[0:1], {KA['A_wphi']}")
    k.load_ptr(8, ("ws", WS_KV))
    k.load_ptr(10, ("ws", WS_O))
    k.i(f"s_cmp_ge_u32 s2, {nwg}")
    k.i(f"s_cbranch_scc1 {k.ref('done')}")
    k.i("s_waitcnt lgkmcnt(0)")
    k.fix_ptr(4, ("ws", WS_QKV))
    k.fix_ptr(8, ("ws", WS_KV))
    k.fix_ptr(10, ("ws", WS_O))
    k.srd(12, 4, S * N3 * 2)
    k.srd(16, 6, H * 648)
    k.srd(20, 8, H * 4096)
    k.srd(28, 10, XB)
    k.i("s_lshr_b32 s32, s2, 4")
    k.i("s_and_b32 s33, s2, 15")
    k.i("s_mul_i32 s24, s32, 36")
    k.nv = 1
    vt = k.valloc(1); vt2 = k.valloc(1); vt3 = k.valloc(1); vgq = k.valloc(1); vgo = k.valloc(1)
    wa = k.valloc(24, 4)
    qb = k.valloc(8, 4)
    pk = k.valloc(16, 4)
    ep = k.valloc(10, 2); em = k.valloc(10, 2)
    kva = k.valloc(16, 4)
    pb = k.valloc(16, 4)
    acc = k.valloc(16, 4)
    emit_wphi_frags(k, wa, vt, vt2, vt3, 32, 16)
    k.i(f"v_and_b32 v{vt}, 63, v0")
    k.i(f"v_cmp_gt_u32 s[26:27], 32, v{vt}")
    k.i(f"v_lshrrev_b32 v{vt2}, 6, v0")
    k.i(f"v_lshlrev_b32 v{vt2}, 5, v{vt2}")
    k.i(f"v_and_b32 v{vt3}, 31, v0")
    k.i("s_lshl_b32 s34, s33, 7")
    k.i(f"v_add3_u32 v{vt2}, v{vt2}, v{vt3}, s34")
    k.i(f"v_mul_u32_u24 v{vgq}, 3456, v{vt2}")
    k.i(f"v_bfe_u32 v{vt3}, v0, 5, 1")
    k.i(f"v_lshlrev_b32 v{vt3}, 4, v{vt3}")
    k.i(f"v_add3_u32 v{vgq}, v{vgq}, v{vt3}, s24")
    k.i(f"v_mul_u32_u24 v{vgo}, 1152, v{vt2}")
    k.i(f"v_lshrrev_b32 v{vt3}, 1, v{vt3}")
    k.i(f"v_add3_u32 v{vgo}, v{vgo}, v{vt3}, s24")
    for j in range(4):
        k.i(f"buffer_load_dword v{qb+j}, v{vgq}, s[12:15], 0 offen offset:{4*j}")
    k.i(f"buffer_load_dword v{qb+4}, v{vgq}, s[12:15], 0 offen offset:32")
    for j in range(5, 8):
        k.i(f"v_mov_b32 v{qb+j}, 0")
    k.i(f"v_lshlrev_b32 v{vt}, 4, v{vt}")
    k.i("s_lshl_b32 s35, s32, 12")
    for q in range(4):
        k.i(f"buffer_load_dwordx4 v[{kva+4*q}:{kva+4*q+3}], v{vt}, s[20:23], s35 offen offset:{q*1024}")
    k.i("s_waitcnt vmcnt(4)")
    k.i(f"v_cndmask_b32 v{qb+4}, 0, v{qb+4}, s[26:27]")
    k.i("s_nop 1")
    k.i(f"v_mfma_f32_32x32x16_bf16 v[{pk}:{pk+15}], v[{wa}:{wa+3}], v[{qb}:{qb+3}], 0")
    k.i(f"v_mfma_f32_32x32x16_bf16 v[{pk}:{pk+15}], v[{wa+4}:{wa+7}], v[{qb+4}:{qb+7}], v[{pk}:{pk+15}]")
    k.i("s_nop 7"); k.i("s_nop 3")
    emit_dual_softmax(k, pk, ep, em, vt, vt2, vt3, 26)
    for ft, e in ((0, ep), (1, em)):
        for j in range(5):
            k.i(f"v_cvt_pk_bf16_f32 v{pb+8*ft+j}, v{e+2*j}, v{e+2*j+1}")
        for j in range(5, 8):
            k.i(f"v_mov_b32 v{pb+8*ft+j}, 0")
    k.i("s_waitcnt vmcnt(0)")
    k.i("s_nop 1")
    first = True
    for ft in range(2):
        for ks in range(2):
            a = kva + 4 * (2 * ft + ks)
            b = pb + 8 * ft + 4 * ks
            c = "0" if first else f"v[{acc}:{acc+15}]"
            k.i(f"v_mfma_f32_32x32x16_bf16 v[{acc}:{acc+15}], v[{a}:{a+3}], v[{b}:{b+3}], {c}")
            first = False
    k.i("s_nop 7"); k.i("s_nop 7")
    k.i(f"v_add_f32 v{vt}, 0x{f2u(1e-6):x}, v{acc+10}")
    k.i(f"v_mov_b32 v{vt2}, v{vt}")
    k.i("s_nop 1")
    k.i(f"v_permlane32_swap_b32 v{vt}, v{vt2}")
    k.i(f"v_rcp_f32 v{vt}, v{vt}")
    k.i("s_nop 0")
    for r in range(10):
        k.i(f"v_mul_f32 v{acc+r}, v{acc+r}, v{vt}")
    for r in range(0, 10, 2):
        k.i(f"v_cvt_pk_bf16_f32 v{pk+r//2}, v{acc+r}, v{acc+r+1}")
    k.i(f"buffer_store_dword v{pk}, v{vgo}, s[28:31], 0 offen")
    k.i(f"buffer_store_dword v{pk+1}, v{vgo}, s[28:31], 0 offen offset:4")
    k.i(f"buffer_store_dword v{pk+2}, v{vgo}, s[28:31], 0 offen offset:16")
    k.i(f"buffer_store_dword v{pk+3}, v{vgo}, s[28:31], 0 offen offset:20")
    k.i("s_mov_b64 exec, s[26:27]")
    k.i(f"buffer_store_dword v{pk+4}, v{vgo}, s[28:31], 0 offen offset:32")
    k.lab("done")
    k.i("s_endpgm")
    return k
```

```python
import sys
from gen import *
from gen_attn import *
from gen_lin import *
ks = {}
order = []
xs = ["A_x", ("ws", WS_X1), ("ws", WS_X2), ("ws", WS_X3)]
xd = [("ws", WS_X1), ("ws", WS_X2), ("ws", WS_X3), "out"]
ks["qkva"] = gen_gemm("qkva_kernel", ("ws", WS_XN), "A_wqkv", N3, ("ws", WS_QKV))
ks["qkvb"] = gen_gemm("qkvb_kernel", ("ws", WS_XN), "B_wqkv", N3, ("ws", WS_QKV))
ks["kvred"] = gen_kvred("kvred_kernel")
ks["apply"] = gen_apply("apply_kernel")
ks["attn"] = gen_attn("attn_kernel")
for L in range(4):
    ks[f"ln{L}"] = gen_ln(f"ln{L}_kernel", xs[L], ("ws", WS_XN))
    ks[f"op{L}"] = gen_gemm(f"op{L}_kernel", ("ws", WS_O), "A_wo" if L % 2 == 0 else "B_wo", D, xd[L], res=xs[L])
    if L % 2 == 0:
        order += [f"ln{L}", "qkva", "kvred", "apply", f"op{L}"]
    else:
        order += [f"ln{L}", "qkvb", "attn", f"op{L}"]
emit(ks, order, sys.argv[1] if len(sys.argv) > 1 else "interleave_layers__linear_kernel_hedgehog__softmax_full_mha__prompt.s")
```

```python
from gen import *
import math
LOG2E = math.log2(math.e)


def emit_wphi_frags(k, wa, vt, vt2, vt3, sh, srd):
    tmp = wa + 8
    k.i(f"v_and_b32 v{vt}, 31, v0")
    k.i(f"v_bfe_u32 v{vt2}, v0, 5, 1")
    k.i(f"v_lshlrev_b32 v{vt2}, 3, v{vt2}")
    k.i(f"s_mul_i32 s40, s{sh}, 648")
    for half in range(2):
        for j in range(8):
            k.i(f"v_add_u32 v{vt3}, {16*half + j}, v{vt2}")
            k.i(f"v_cmp_gt_u32 vcc, 18, v{vt3}")
            k.i(f"v_mul_u32_u24 v{vt3}, 36, v{vt3}")
            k.i(f"v_lshl_add_u32 v{vt3}, v{vt}, 1, v{vt3}")
            k.i(f"v_add_u32 v{vt3}, s40, v{vt3}")
            k.i(f"s_mov_b64 s[42:43], vcc")
            k.i(f"v_cmp_gt_u32 vcc, 18, v{vt}")
            k.i(f"s_and_b64 vcc, vcc, s[42:43]")
            k.i("s_nop 1")
            k.i(f"v_cndmask_b32 v{vt3}, -16, v{vt3}, vcc")
            k.i(f"buffer_load_ushort v{tmp+8*half+j}, v{vt3}, s[{srd}:{srd+3}], 0 offen")
    k.i("s_waitcnt vmcnt(0)")
    for half in range(2):
        for j in range(4):
            k.i(f"v_lshl_or_b32 v{wa+4*half+j}, v{tmp+8*half+2*j+1}, 16, v{tmp+8*half+2*j}")


def emit_dual_softmax(k, pk, ep, em, vt, vt2, vt3, vmask_lo):
    k.i(f"v_cndmask_b32 v{ep}, v{pk}, v{pk+8}, s[{vmask_lo}:{vmask_lo+1}]")
    k.i(f"v_cndmask_b32 v{ep+1}, v{pk}, v{pk+9}, s[{vmask_lo}:{vmask_lo+1}]")
    k.i(f"v_max3_f32 v{vt}, v{ep}, v{ep+1}, v{pk}")
    k.i(f"v_min3_f32 v{vt2}, v{ep}, v{ep+1}, v{pk}")
    for r in range(1, 8, 2):
        if r + 1 < 8:
            k.i(f"v_max3_f32 v{vt}, v{vt}, v{pk+r}, v{pk+r+1}")
            k.i(f"v_min3_f32 v{vt2}, v{vt2}, v{pk+r}, v{pk+r+1}")
        else:
            k.i(f"v_max_f32 v{vt}, v{vt}, v{pk+r}")
            k.i(f"v_min_f32 v{vt2}, v{vt2}, v{pk+r}")
    k.i(f"v_mov_b32 v{ep}, v{vt}")
    k.i(f"v_mov_b32 v{ep+1}, v{vt2}")
    k.i("s_nop 1")
    k.i(f"v_permlane32_swap_b32 v{vt}, v{ep}")
    k.i(f"v_permlane32_swap_b32 v{vt2}, v{ep+1}")
    k.i(f"v_max_f32 v{vt}, v{vt}, v{ep}")
    k.i(f"v_min_f32 v{vt2}, v{vt2}, v{ep+1}")
    k.i(f"s_mov_b32 s44, 0x{f2u(LOG2E):x}")
    for r in range(10):
        k.i(f"v_sub_f32 v{ep+r}, v{pk+r}, v{vt}")
        k.i(f"v_sub_f32 v{em+r}, v{vt2}, v{pk+r}")
        k.i(f"v_mul_f32 v{ep+r}, s44, v{ep+r}")
        k.i(f"v_mul_f32 v{em+r}, s44, v{em+r}")
        k.i(f"v_exp_f32 v{ep+r}, v{ep+r}")
        k.i(f"v_exp_f32 v{em+r}, v{em+r}")
    k.i("s_nop 0")
    for r in (8, 9):
        k.i(f"v_cndmask_b32 v{ep+r}, 0, v{ep+r}, s[{vmask_lo}:{vmask_lo+1}]")
        k.i(f"v_cndmask_b32 v{em+r}, 0, v{em+r}, s[{vmask_lo}:{vmask_lo+1}]")
    k.i(f"v_add_f32 v{vt}, v{ep}, v{ep+1}")
    k.i(f"v_add_f32 v{vt2}, v{em}, v{em+1}")
    for r in range(2, 10):
        k.i(f"v_add_f32 v{vt}, v{vt}, v{ep+r}")
        k.i(f"v_add_f32 v{vt2}, v{vt2}, v{em+r}")
    k.i(f"v_mov_b32 v{vt3}, v{vt}")
    k.i(f"v_mov_b32 v{pk}, v{vt2}")
    k.i("s_nop 1")
    k.i(f"v_permlane32_swap_b32 v{vt}, v{vt3}")
    k.i(f"v_permlane32_swap_b32 v{vt2}, v{pk}")
    k.i(f"v_add_f32 v{vt}, v{vt}, v{vt3}")
    k.i(f"v_add_f32 v{vt2}, v{vt2}, v{pk}")
    k.i(f"v_rcp_f32 v{vt}, v{vt}")
    k.i(f"v_rcp_f32 v{vt2}, v{vt2}")
    k.i("s_nop 0")
    for r in range(10):
        k.i(f"v_mul_f32 v{ep+r}, v{ep+r}, v{vt}")
        k.i(f"v_mul_f32 v{em+r}, v{em+r}, v{vt2}")


PSTR = 192
PHB = 32 * PSTR
VTB = 32 * 64
WVB = PHB + VTB


def gen_kvred(name):
    k = Kern(name, 512, H * 8, lds=8 * WVB)
    k.load_ptr(4, ("ws", WS_QKV))
    k.i(f"s_load_dwordx2 s[6:7], s[0:1], {KA['A_wphi']}")
    k.load_ptr(8, ("ws", WS_KV))
    k.i(f"s_cmp_ge_u32 s2, {H*8}")
    k.i(f"s_cbranch_scc1 {k.ref('done')}")
    k.i("s_waitcnt lgkmcnt(0)")
    k.fix_ptr(4, ("ws", WS_QKV))
    k.fix_ptr(8, ("ws", WS_KV))
    k.srd(12, 4, S * N3 * 2)
    k.srd(20, 8, H * 8 * 8192)
    k.i("s_lshr_b32 s46, s2, 3")
    k.i("s_and_b32 s47, s2, 7")
    k.i("s_mul_i32 s24, s46, 36")
    k.srd(16, 6, H * 648)
    k.nv = 1
    vt = k.valloc(1); vt2 = k.valloc(1); vt3 = k.valloc(1)
    vgk = k.valloc(1); vlb = k.valloc(1); vlp = k.valloc(1); vpr = k.valloc(1); vvr = k.valloc(1); vlv = k.valloc(1)
    wa = k.valloc(24, 4)
    kb = k.valloc(8, 4)
    vs = k.valloc(8, 4)
    pk = k.valloc(16, 4)
    ep = k.valloc(10, 2); em = k.valloc(10, 2)
    af = k.valloc(8, 4); bfv = k.valloc(4, 4)
    acc = k.valloc(32, 4)
    emit_wphi_frags(k, wa, vt, vt2, vt3, 46, 16)
    k.i(f"v_and_b32 v{vt}, 63, v0")
    k.i(f"v_cmp_gt_u32 s[26:27], 32, v{vt}")
    k.i(f"v_lshrrev_b32 v{vlb}, 6, v0")
    k.i(f"v_mul_u32_u24 v{vlb}, {WVB}, v{vlb}")
    k.i(f"v_mov_b32 v{pk}, 0"); k.i(f"v_mov_b32 v{pk+1}, 0"); k.i(f"v_mov_b32 v{pk+2}, 0"); k.i(f"v_mov_b32 v{pk+3}, 0")
    k.i(f"v_lshlrev_b32 v{vt2}, 4, v{vt}")
    k.i(f"v_add_u32 v{vt2}, v{vt2}, v{vlb}")
    for j in range(8):
        k.i(f"ds_write_b128 v{vt2}, v[{pk}:{pk+3}] offset:{j*1024}")
    k.i("s_waitcnt lgkmcnt(0)")
    k.i(f"v_and_b32 v{vt2}, 31, v0")
    k.i(f"v_lshlrev_b32 v{vt2}, 6, v{vt2}")
    k.i(f"v_add_u32 v{vt2}, v{vt2}, v{vlb}")
    k.i(f"v_mov_b32 v{vt3}, 0x3f80")
    k.i(f"ds_write_b32 v{vt2}, v{vt3} offset:{PHB + 36}")
    k.i(f"v_lshrrev_b32 v{vt2}, 6, v0")
    k.i(f"v_lshlrev_b32 v{vt2}, 5, v{vt2}")
    k.i(f"v_and_b32 v{vt3}, 31, v0")
    k.i("s_lshl_b32 s48, s47, 8")
    k.i(f"v_add3_u32 v{vt2}, v{vt2}, v{vt3}, s48")
    k.i(f"v_mul_u32_u24 v{vgk}, 3456, v{vt2}")
    k.i(f"v_bfe_u32 v{vt3}, v0, 5, 1")
    k.i(f"v_lshlrev_b32 v{vt3}, 4, v{vt3}")
    k.i(f"v_add3_u32 v{vgk}, v{vgk}, v{vt3}, s24")
    k.i(f"v_and_b32 v{vt2}, 31, v0")
    k.i(f"v_mul_u32_u24 v{vlp}, {PSTR}, v{vt2}")
    k.i(f"v_bfe_u32 v{vt3}, v0, 5, 1")
    k.i(f"v_lshlrev_b32 v{vt3}, 3, v{vt3}")
    k.i(f"v_add3_u32 v{vlp}, v{vlp}, v{vt3}, v{vlb}")
    k.i(f"v_lshlrev_b32 v{vlv}, 6, v{vt2}")
    k.i(f"v_lshlrev_b32 v{vt3}, 1, v{vt3}")
    k.i(f"v_add3_u32 v{vlv}, v{vlv}, v{vt3}, v{vlb}")
    k.i(f"v_bfe_u32 v{vt}, v0, 5, 1")
    k.i(f"v_lshlrev_b32 v{vt}, 3, v{vt}")
    k.i(f"v_bfe_u32 v{vt2}, v0, 2, 2")
    k.i(f"v_add_u32 v{vt}, v{vt}, v{vt2}")
    k.i(f"v_bfe_u32 v{vt2}, v0, 4, 1")
    k.i(f"v_lshlrev_b32 v{vt2}, 5, v{vt2}")
    k.i(f"v_and_b32 v{vt3}, 3, v0")
    k.i(f"v_lshlrev_b32 v{vt3}, 3, v{vt3}")
    k.i(f"v_add_u32 v{vt2}, v{vt2}, v{vt3}")
    k.i(f"v_mul_u32_u24 v{vpr}, {PSTR}, v{vt}")
    k.i(f"v_add3_u32 v{vpr}, v{vpr}, v{vt2}, v{vlb}")
    k.i(f"v_lshlrev_b32 v{vvr}, 6, v{vt}")
    k.i(f"v_add3_u32 v{vvr}, v{vvr}, v{vt2}, v{vlb}")
    for r in range(32):
        k.i(f"v_mov_b32 v{acc+r}, 0")
    for r in range(5, 8):
        k.i(f"v_mov_b32 v{kb+r}, 0")
    for g in range(1):
        so = g * 32 * 3456
        k.i(f"s_mov_b32 s28, 0x{so:x}")
        for j in range(4):
            k.i(f"buffer_load_dword v{kb+j}, v{vgk}, s[12:15], s28 offen offset:{1152+4*j}")
        k.i(f"buffer_load_dword v{kb+4}, v{vgk}, s[12:15], s28 offen offset:{1152+32}")
        for j in range(4):
            k.i(f"buffer_load_dword v{vs+j}, v{vgk}, s[12:15], s28 offen offset:{2304+4*j}")
        k.i(f"buffer_load_dword v{vs+4}, v{vgk}, s[12:15], s28 offen offset:{2304+32}")
        k.i("s_waitcnt vmcnt(0)")
        k.i(f"v_cndmask_b32 v{kb+4}, 0, v{kb+4}, s[26:27]")
        k.i(f"ds_write_b128 v{vlv}, v[{vs}:{vs+3}] offset:{PHB}")
        k.i(f"s_mov_b64 s[30:31], exec")
        k.i(f"s_mov_b64 exec, s[26:27]")
        k.i(f"ds_write_b32 v{vlv}, v{vs+4} offset:{PHB+32}")
        k.i(f"s_mov_b64 exec, s[30:31]")
        k.i("s_nop 1")
        k.i(f"v_mfma_f32_32x32x16_bf16 v[{pk}:{pk+15}], v[{wa}:{wa+3}], v[{kb}:{kb+3}], 0")
        k.i(f"v_mfma_f32_32x32x16_bf16 v[{pk}:{pk+15}], v[{wa+4}:{wa+7}], v[{kb+4}:{kb+7}], v[{pk}:{pk+15}]")
        k.i("s_nop 7"); k.i("s_nop 3")
        emit_dual_softmax(k, pk, ep, em, vt, vt2, vt3, 26)
        for ft, e in ((0, ep), (1, em)):
            for r in range(0, 10, 2):
                k.i(f"v_cvt_pk_bf16_f32 v{pk+r//2}, v{e+r}, v{e+r+1}")
            for r in range(0, 10, 2):
                fo = (8 * (r // 4) + r % 4) * 2
                k.i(f"ds_write_b32 v{vlp}, v{pk+r//2} offset:{ft*64 + fo}")
        k.i("s_waitcnt lgkmcnt(0)")
        for ks in range(2):
            for j in range(2):
                k.i(f"ds_read_b64_tr_b16 v[{bfv+2*j}:{bfv+2*j+1}], v{vvr} offset:{PHB + (ks*16+4*j)*64}")
            for ft in range(2):
                for j in range(2):
                    k.i(f"ds_read_b64_tr_b16 v[{af+4*ft+2*j}:{af+4*ft+2*j+1}], v{vpr} offset:{(ks*16+4*j)*PSTR + ft*64}")
            k.i("s_waitcnt lgkmcnt(0)")
            for ft in range(2):
                a = acc + 16 * ft
                k.i(f"v_mfma_f32_32x32x16_bf16 v[{a}:{a+15}], v[{af+4*ft}:{af+4*ft+3}], v[{bfv}:{bfv+3}], v[{a}:{a+15}]")
            k.i("s_nop 7"); k.i("s_nop 3")
    k.i("s_nop 7"); k.i("s_nop 7")
    k.i("s_barrier")
    k.i(f"v_and_b32 v{vt}, 63, v0")
    k.i(f"v_lshlrev_b32 v{vt}, 2, v{vt}")
    k.i(f"v_add_u32 v{vt2}, v{vt}, v{vlb}")
    for r in range(32):
        k.i(f"ds_write_b32 v{vt2}, v{acc+r} offset:{r*256}")
    k.i("s_waitcnt lgkmcnt(0)")
    k.i("s_barrier")
    k.i(f"v_cmp_gt_u32 vcc, 64, v0")
    k.i("s_and_saveexec_b64 s[30:31], vcc")
    k.i(f"s_cbranch_execz {k.ref('done')}")
    tmp = wa
    for r in range(32):
        for w in range(1, 8):
            k.i(f"ds_read_b32 v{tmp+w}, v{vt} offset:{w*WVB + r*256}")
        k.i("s_waitcnt lgkmcnt(0)")
        for w in range(1, 8):
            k.i(f"v_add_f32 v{acc+r}, v{acc+r}, v{tmp+w}")
    k.i(f"v_lshlrev_b32 v{vt}, 4, v0")
    k.i("s_lshl_b32 s28, s2, 13")
    for q in range(8):
        if q == 4:
            k.i(f"v_add_u32 v{vt}, 0x1000, v{vt}")
        k.i(f"buffer_store_dwordx4 v[{acc+4*q}:{acc+4*q+3}], v{vt}, s[20:23], s28 offen offset:{(q%4)*1024}")
    k.lab("done")
    k.i("s_endpgm")
    return k


def gen_apply(name):
    nwg = H * 16
    k = Kern(name, 256, nwg)
    k.load_ptr(4, ("ws", WS_QKV))
    k.i(f"s_load_dwordx2 s[6:7], s[0:1], {KA['A_wphi']}")
    k.load_ptr(8, ("ws", WS_KV))
    k.load_ptr(10, ("ws", WS_O))
    k.i(f"s_cmp_ge_u32 s2, {nwg}")
    k.i(f"s_cbranch_scc1 {k.ref('done')}")
    k.i("s_waitcnt lgkmcnt(0)")
    k.fix_ptr(4, ("ws", WS_QKV))
    k.fix_ptr(8, ("ws", WS_KV))
    k.fix_ptr(10, ("ws", WS_O))
    k.srd(12, 4, S * N3 * 2)
    k.srd(16, 6, H * 648)
    k.srd(20, 8, H * 8 * 8192)
    k.srd(28, 10, XB)
    k.i("s_lshr_b32 s32, s2, 4")
    k.i("s_and_b32 s33, s2, 15")
    k.i("s_mul_i32 s24, s32, 36")
    k.nv = 1
    vt = k.valloc(1); vt2 = k.valloc(1); vt3 = k.valloc(1); vgq = k.valloc(1); vgo = k.valloc(1)
    wa = k.valloc(24, 4)
    qb = k.valloc(8, 4)
    pk = k.valloc(16, 4)
    ep = k.valloc(10, 2); em = k.valloc(10, 2)
    kva = k.valloc(16, 4)
    pb = k.valloc(16, 4)
    acc = k.valloc(16, 4)
    emit_wphi_frags(k, wa, vt, vt2, vt3, 32, 16)
    k.i(f"v_and_b32 v{vt}, 63, v0")
    k.i(f"v_cmp_gt_u32 s[26:27], 32, v{vt}")
    k.i(f"v_lshrrev_b32 v{vt2}, 6, v0")
    k.i(f"v_lshlrev_b32 v{vt2}, 5, v{vt2}")
    k.i(f"v_and_b32 v{vt3}, 31, v0")
    k.i("s_lshl_b32 s34, s33, 7")
    k.i(f"v_add3_u32 v{vt2}, v{vt2}, v{vt3}, s34")
    k.i(f"v_mul_u32_u24 v{vgq}, 3456, v{vt2}")
    k.i(f"v_bfe_u32 v{vt3}, v0, 5, 1")
    k.i(f"v_lshlrev_b32 v{vt3}, 4, v{vt3}")
    k.i(f"v_add3_u32 v{vgq}, v{vgq}, v{vt3}, s24")
    k.i(f"v_mul_u32_u24 v{vgo}, 1152, v{vt2}")
    k.i(f"v_lshrrev_b32 v{vt3}, 1, v{vt3}")
    k.i(f"v_add3_u32 v{vgo}, v{vgo}, v{vt3}, s24")
    for j in range(4):
        k.i(f"buffer_load_dword v{qb+j}, v{vgq}, s[12:15], 0 offen offset:{4*j}")
    k.i(f"buffer_load_dword v{qb+4}, v{vgq}, s[12:15], 0 offen offset:32")
    for j in range(5, 8):
        k.i(f"v_mov_b32 v{qb+j}, 0")
    k.i(f"v_lshlrev_b32 v{vt}, 4, v{vt}")
    k.i("s_lshl_b32 s35, s32, 16")
    k.i(f"v_add_u32 v{vt2}, 0x1000, v{vt}")
    kp = k.valloc(64, 4)
    for c in range(8):
        dst = kp if c == 0 else kp + 32
        for q in range(8):
            k.i(f"buffer_load_dwordx4 v[{dst+4*q}:{dst+4*q+3}], v{vt if q < 4 else vt2}, s[20:23], s35 offen offset:{(q%4)*1024}")
        k.i("s_add_u32 s35, s35, 0x2000")
        if c:
            k.i("s_waitcnt vmcnt(0)")
            for r in range(32):
                k.i(f"v_add_f32 v{kp+r}, v{kp+r}, v{kp+32+r}")
    for j in range(16):
        k.i(f"v_cvt_pk_bf16_f32 v{kva+j}, v{kp+2*j}, v{kp+2*j+1}")
    k.i(f"v_cndmask_b32 v{qb+4}, 0, v{qb+4}, s[26:27]")
    k.i("s_nop 1")
    k.i(f"v_mfma_f32_32x32x16_bf16 v[{pk}:{pk+15}], v[{wa}:{wa+3}], v[{qb}:{qb+3}], 0")
    k.i(f"v_mfma_f32_32x32x16_bf16 v[{pk}:{pk+15}], v[{wa+4}:{wa+7}], v[{qb+4}:{qb+7}], v[{pk}:{pk+15}]")
    k.i("s_nop 7"); k.i("s_nop 3")
    emit_dual_softmax(k, pk, ep, em, vt, vt2, vt3, 26)
    for ft, e in ((0, ep), (1, em)):
        for j in range(5):
            k.i(f"v_cvt_pk_bf16_f32 v{pb+8*ft+j}, v{e+2*j}, v{e+2*j+1}")
        for j in range(5, 8):
            k.i(f"v_mov_b32 v{pb+8*ft+j}, 0")
    k.i("s_waitcnt vmcnt(0)")
    k.i("s_nop 1")
    first = True
    for ft in range(2):
        for ks in range(2):
            a = kva + 4 * (2 * ft + ks)
            b = pb + 8 * ft + 4 * ks
            c = "0" if first else f"v[{acc}:{acc+15}]"
            k.i(f"v_mfma_f32_32x32x16_bf16 v[{acc}:{acc+15}], v[{a}:{a+3}], v[{b}:{b+3}], {c}")
            first = False
    k.i("s_nop 7"); k.i("s_nop 7")
    k.i(f"v_add_f32 v{vt}, 0x{f2u(1e-6):x}, v{acc+10}")
    k.i(f"v_mov_b32 v{vt2}, v{vt}")
    k.i("s_nop 1")
    k.i(f"v_permlane32_swap_b32 v{vt}, v{vt2}")
    k.i(f"v_rcp_f32 v{vt}, v{vt}")
    k.i("s_nop 0")
    for r in range(10):
        k.i(f"v_mul_f32 v{acc+r}, v{acc+r}, v{vt}")
    for r in range(0, 10, 2):
        k.i(f"v_cvt_pk_bf16_f32 v{pk+r//2}, v{acc+r}, v{acc+r+1}")
    k.i(f"buffer_store_dword v{pk}, v{vgo}, s[28:31], 0 offen")
    k.i(f"buffer_store_dword v{pk+1}, v{vgo}, s[28:31], 0 offen offset:4")
    k.i(f"buffer_store_dword v{pk+2}, v{vgo}, s[28:31], 0 offen offset:16")
    k.i(f"buffer_store_dword v{pk+3}, v{vgo}, s[28:31], 0 offen offset:20")
    k.i("s_mov_b64 exec, s[26:27]")
    k.i(f"buffer_store_dword v{pk+4}, v{vgo}, s[28:31], 0 offen offset:32")
    k.lab("done")
    k.i("s_endpgm")
    return k
```

```python
import sys

S, D, H, DH = 2048, 576, 32, 18
N3 = 3 * D
KA = dict(A_x=0, A_wqkv=8, A_wphi=16, A_wo=24, B_x=32, B_wqkv=40, B_wo=48, out=56, dbg=64, ws=72)
XB = S * D * 2
WS_XN = 0
WS_QKV = WS_XN + XB
WS_O = WS_QKV + S * N3 * 2
WS_X1 = WS_O + XB
WS_X2 = WS_X1 + XB
WS_X3 = WS_X2 + XB
WS_KV = WS_X3 + XB
WS_END = WS_KV + H * 8 * 8192


class Kern:
    def __init__(self, name, block, grid, lds=0):
        self.name, self.block, self.grid, self.lds = name, block, grid, lds
        self.L = []
        self.nv = 0
        self.ns = 102

    def i(self, s):
        self.L.append("    " + s)

    def lab(self, s):
        self.L.append(f"{self.name}_{s}:")

    def ref(self, s):
        return f"{self.name}_{s}"

    def valloc(self, n, align=1):
        b = (self.nv + align - 1) // align * align
        self.nv = b + n
        assert self.nv <= 512
        return b

    def text(self):
        nv = max(self.nv, 1)
        acc = (nv + 3) // 4 * 4
        o = [f".globl {self.name}", ".p2align 8", f".type {self.name},@function", f"{self.name}:"]
        o += self.L
        return "\n".join(o) + "\n"

    def desc(self):
        nv = max(self.nv, 1)
        acc = (nv + 3) // 4 * 4
        if getattr(self, "na", 0):
            nv = acc + self.na
        return (f".amdhsa_kernel {self.name}\n"
                f"  .amdhsa_next_free_vgpr {nv}\n"
                f"  .amdhsa_next_free_sgpr {self.ns}\n"
                f"  .amdhsa_accum_offset {acc}\n"
                f"  .amdhsa_group_segment_fixed_size 0\n"
                f"  .amdhsa_kernarg_size 80\n"
                f"  .amdhsa_user_sgpr_count 2\n"
                f"  .amdhsa_user_sgpr_kernarg_segment_ptr 1\n"
                f"  .amdhsa_system_sgpr_workgroup_id_x 1\n"
                f".end_amdhsa_kernel\n")

    def load_ptr(self, sdst, src):
        if isinstance(src, str):
            self.i(f"s_load_dwordx2 s[{sdst}:{sdst+1}], s[0:1], {KA[src]}")
        else:
            self.i(f"s_load_dwordx2 s[{sdst}:{sdst+1}], s[0:1], {KA['ws']}")

    def fix_ptr(self, sdst, src):
        if not isinstance(src, str):
            off = src[1]
            if off:
                self.i(f"s_add_u32 s{sdst}, s{sdst}, 0x{off:x}")
                self.i(f"s_addc_u32 s{sdst+1}, s{sdst+1}, 0")

    def srd(self, sd, sp, nbytes):
        self.i(f"s_mov_b32 s{sd}, s{sp}")
        self.i(f"s_and_b32 s{sd+1}, s{sp+1}, 0xffff")
        self.i(f"s_mov_b32 s{sd+2}, 0x{nbytes:x}")
        self.i(f"s_mov_b32 s{sd+3}, 0x20000")


def src_bytes(src):
    return XB


def gen_ln(name, src, dst):
    k = Kern(name, 256, S // 8)
    k.load_ptr(4, src)
    k.load_ptr(6, dst)
    k.i(f"s_cmp_ge_u32 s2, {S // 8}")
    k.i(f"s_cbranch_scc1 {k.ref('done')}")
    k.i("s_waitcnt lgkmcnt(0)")
    k.fix_ptr(4, src)
    k.fix_ptr(6, dst)
    k.srd(8, 4, XB)
    k.srd(12, 6, XB)
    k.nv = 1
    vt = k.valloc(1)
    voff = k.valloc(1)
    vraw = k.valloc(9, 4)
    vx = k.valloc(18)
    vs = k.valloc(1)
    vt2 = k.valloc(1)
    vmean = k.valloc(1)
    vr = k.valloc(1)
    k.i(f"s_lshl_b32 s3, s2, 8")
    k.i(f"v_add_u32 v{vt}, s3, v0")
    k.i(f"v_lshrrev_b32 v{voff}, 5, v{vt}")
    k.i(f"v_mul_u32_u24 v{voff}, 1152, v{voff}")
    k.i(f"v_and_b32 v{vt}, 31, v{vt}")
    k.i(f"v_mul_u32_u24 v{vt}, 36, v{vt}")
    k.i(f"v_add_u32 v{voff}, v{voff}, v{vt}")
    k.i(f"buffer_load_dwordx4 v[{vraw}:{vraw+3}], v{voff}, s[8:11], 0 offen")
    k.i(f"buffer_load_dwordx4 v[{vraw+4}:{vraw+7}], v{voff}, s[8:11], 0 offen offset:16")
    k.i(f"buffer_load_dword v{vraw+8}, v{voff}, s[8:11], 0 offen offset:32")
    k.i("s_waitcnt vmcnt(0)")
    for j in range(9):
        k.i(f"v_lshlrev_b32 v{vx+2*j}, 16, v{vraw+j}")
        k.i(f"v_and_b32 v{vx+2*j+1}, 0xffff0000, v{vraw+j}")

    def reduce32(v):
        for off in (0x041F, 0x081F, 0x101F, 0x201F, 0x401F):
            k.i(f"ds_swizzle_b32 v{vt2}, v{v} offset:0x{off:x}")
            k.i("s_waitcnt lgkmcnt(0)")
            k.i(f"v_add_f32 v{v}, v{v}, v{vt2}")

    k.i(f"v_add_f32 v{vs}, v{vx}, v{vx+1}")
    for j in range(2, 18):
        k.i(f"v_add_f32 v{vs}, v{vs}, v{vx+j}")
    reduce32(vs)
    k.i(f"v_mul_f32 v{vmean}, 0x{f2u(1.0/576):x}, v{vs}")
    for j in range(18):
        k.i(f"v_sub_f32 v{vx+j}, v{vx+j}, v{vmean}")
    k.i(f"v_mul_f32 v{vs}, v{vx}, v{vx}")
    for j in range(1, 18):
        k.i(f"v_fmac_f32 v{vs}, v{vx+j}, v{vx+j}")
    reduce32(vs)
    k.i(f"v_mov_b32 v{vr}, 0x{f2u(1e-5):x}")
    k.i(f"v_fmac_f32 v{vr}, 0x{f2u(1.0/576):x}, v{vs}")
    k.i(f"v_rsq_f32 v{vr}, v{vr}")
    k.i("s_nop 0")
    for j in range(18):
        k.i(f"v_mul_f32 v{vx+j}, v{vx+j}, v{vr}")
    for j in range(9):
        k.i(f"v_cvt_pk_bf16_f32 v{vraw+j}, v{vx+2*j}, v{vx+2*j+1}")
    k.i(f"buffer_store_dwordx4 v[{vraw}:{vraw+3}], v{voff}, s[12:15], 0 offen")
    k.i(f"buffer_store_dwordx4 v[{vraw+4}:{vraw+7}], v{voff}, s[12:15], 0 offen offset:16")
    k.i(f"buffer_store_dword v{vraw+8}, v{voff}, s[12:15], 0 offen offset:32")
    k.lab("done")
    k.i("s_endpgm")
    return k


def f2u(x):
    import struct
    return struct.unpack("<I", struct.pack("<f", x))[0]


XSTR = 144
WSTR = 192
XBYTES = 128 * XSTR
WBYTES = 64 * WSTR
BUFB = XBYTES + WBYTES


def magic_div(k, sdst, ssrc, d, stmp):
    m = (2**32 + d - 1) // d
    k.i(f"s_mov_b32 s{stmp}, 0x{m:x}")
    k.i(f"s_mul_hi_u32 s{sdst}, s{ssrc}, s{stmp}")


def gen_gemm(name, asrc, wslot, N, cdst, res=None):
    ntn = N // 64
    nwg = (S // 128) * ntn
    k = Kern(name, 256, nwg, lds=2 * BUFB)
    k.load_ptr(4, asrc)
    k.i(f"s_load_dwordx2 s[6:7], s[0:1], {KA[wslot]}")
    k.load_ptr(8, cdst)
    if res is not None:
        k.load_ptr(10, res)
    k.i(f"s_cmp_ge_u32 s2, {nwg}")
    k.i(f"s_cbranch_scc1 {k.ref('done')}")
    k.i("s_waitcnt lgkmcnt(0)")
    k.fix_ptr(4, asrc)
    k.fix_ptr(8, cdst)
    if res is not None:
        k.fix_ptr(10, res)
    k.srd(12, 4, XB)
    k.srd(16, 6, D * N * 2)
    cbytes = S * N * 2
    k.srd(20, 8, cbytes)
    if res is not None:
        k.srd(24, 10, XB)
    magic_div(k, 28, 2, ntn, 30)
    k.i(f"s_mul_i32 s30, s28, {ntn}")
    k.i("s_sub_u32 s29, s2, s30")
    k.nv = 1
    vga = k.valloc(1)
    vgw = k.valloc(1)
    vla = k.valloc(1)
    vlw = k.valloc(1)
    vxr = k.valloc(1)
    vwr = k.valloc(1)
    vt = k.valloc(1)
    vt2 = k.valloc(1)
    sa0 = k.valloc(32, 4)
    sw0 = k.valloc(16, 4)
    xf = k.valloc(16, 4)
    wf = k.valloc(32, 4)
    acc = k.valloc(32, 4)
    k.i(f"s_lshl_b32 s30, s28, 7")
    k.i(f"v_lshrrev_b32 v{vt}, 1, v0")
    k.i(f"v_add_u32 v{vt2}, s30, v{vt}")
    k.i(f"v_mul_u32_u24 v{vga}, 1152, v{vt2}")
    k.i(f"v_and_b32 v{vt2}, 1, v0")
    k.i(f"v_lshlrev_b32 v{vt2}, 6, v{vt2}")
    k.i(f"v_add_u32 v{vga}, v{vga}, v{vt2}")
    k.i(f"v_mul_u32_u24 v{vla}, {XSTR}, v{vt}")
    k.i(f"v_add_u32 v{vla}, v{vla}, v{vt2}")
    k.i(f"v_lshrrev_b32 v{vt}, 2, v0")
    k.i(f"v_mul_u32_u24 v{vgw}, {N*2}, v{vt}")
    k.i(f"v_and_b32 v{vt2}, 3, v0")
    k.i(f"v_lshlrev_b32 v{vt2}, 5, v{vt2}")
    k.i(f"v_add_u32 v{vgw}, v{vgw}, v{vt2}")
    k.i(f"s_lshl_b32 s31, s29, 7")
    k.i(f"v_add_u32 v{vgw}, s31, v{vgw}")
    k.i(f"v_mul_u32_u24 v{vlw}, {WSTR}, v{vt}")
    k.i(f"v_add_u32 v{vlw}, v{vlw}, v{vt2}")
    k.i(f"v_add_u32 v{vlw}, {XBYTES}, v{vlw}")
    k.i(f"v_lshrrev_b32 v{vt}, 6, v0")
    k.i(f"v_lshlrev_b32 v{vt}, 5, v{vt}")
    k.i(f"v_and_b32 v{vt2}, 31, v0")
    k.i(f"v_add_u32 v{vt}, v{vt}, v{vt2}")
    k.i(f"v_mul_u32_u24 v{vxr}, {XSTR}, v{vt}")
    k.i(f"v_bfe_u32 v{vt2}, v0, 5, 1")
    k.i(f"v_lshlrev_b32 v{vt2}, 4, v{vt2}")
    k.i(f"v_add_u32 v{vxr}, v{vxr}, v{vt2}")
    k.i(f"v_bfe_u32 v{vt}, v0, 5, 1")
    k.i(f"v_lshlrev_b32 v{vt}, 3, v{vt}")
    k.i(f"v_bfe_u32 v{vt2}, v0, 2, 2")
    k.i(f"v_add_u32 v{vt}, v{vt}, v{vt2}")
    k.i(f"v_mul_u32_u24 v{vwr}, {WSTR}, v{vt}")
    k.i(f"v_bfe_u32 v{vt}, v0, 4, 1")
    k.i(f"v_lshlrev_b32 v{vt}, 5, v{vt}")
    k.i(f"v_and_b32 v{vt2}, 3, v0")
    k.i(f"v_lshlrev_b32 v{vt2}, 3, v{vt2}")
    k.i(f"v_add3_u32 v{vwr}, v{vwr}, v{vt}, v{vt2}")
    k.i(f"v_add_u32 v{vwr}, {XBYTES}, v{vwr}")
    for r in range(32):
        k.i(f"v_mov_b32 v{acc+r}, 0")

    def gload(kc):
        sa = sa0 + 16 * (kc & 1); sw = sw0 + 8 * (kc & 1)
        for j in range(4):
            k.i(f"buffer_load_dwordx4 v[{sa+4*j}:{sa+4*j+3}], v{vga}, s[12:15], 0 offen offset:{kc*128+j*16}")
        k.i(f"s_mov_b32 s32, 0x{kc*64*N*2:x}")
        for j in range(2):
            k.i(f"buffer_load_dwordx4 v[{sw+4*j}:{sw+4*j+3}], v{vgw}, s[16:19], s32 offen offset:{j*16}")

    gload(0)
    gload(1)
    for kc in range(9):
        b = (kc & 1) * BUFB
        sa = sa0 + 16 * (kc & 1); sw = sw0 + 8 * (kc & 1)
        k.i(f"s_waitcnt vmcnt({6 if kc < 8 else 0})")
        for j in range(4):
            k.i(f"ds_write_b128 v{vla}, v[{sa+4*j}:{sa+4*j+3}] offset:{b+j*16}")
        for j in range(2):
            k.i(f"ds_write_b128 v{vlw}, v[{sw+4*j}:{sw+4*j+3}] offset:{b+j*16}")
        k.i("s_waitcnt lgkmcnt(0)")
        k.i("s_barrier")
        if kc < 7:
            gload(kc + 2)
        for ks in range(4):
            k.i(f"ds_read_b128 v[{xf+4*ks}:{xf+4*ks+3}], v{vxr} offset:{b+ks*32}")
            for nt in range(2):
                for j in range(2):
                    base = wf + 8 * ks + 4 * nt + 2 * j
                    off = b + (ks * 16 + 4 * j) * WSTR + nt * 64
                    k.i(f"ds_read_b64_tr_b16 v[{base}:{base+1}], v{vwr} offset:{off}")
        for ks in range(4):
            k.i(f"s_waitcnt lgkmcnt({15 - 5*ks})")
            for nt in range(2):
                a = wf + 8 * ks + 4 * nt
                k.i(f"v_mfma_f32_32x32x16_bf16 v[{acc+16*nt}:{acc+16*nt+15}], v[{a}:{a+3}], v[{xf+4*ks}:{xf+4*ks+3}], v[{acc+16*nt}:{acc+16*nt+15}]")
    k.i("s_nop 7")
    k.i("s_nop 7")
    k.i(f"v_lshrrev_b32 v{vt}, 6, v0")
    k.i(f"v_lshlrev_b32 v{vt}, 5, v{vt}")
    k.i(f"v_and_b32 v{vt2}, 31, v0")
    k.i(f"v_add3_u32 v{vt}, v{vt}, v{vt2}, s30")
    k.i(f"v_mul_u32_u24 v{vga}, {N*2}, v{vt}")
    k.i(f"v_bfe_u32 v{vt2}, v0, 5, 1")
    k.i(f"v_lshlrev_b32 v{vt2}, 3, v{vt2}")
    k.i(f"v_add3_u32 v{vga}, v{vga}, v{vt2}, s31")
    pk = wf
    if res is None:
        for nt in range(2):
            for g in range(4):
                a = acc + 16 * nt + 4 * g
                p = pk + 2 * (4 * nt + g)
                k.i(f"v_cvt_pk_bf16_f32 v{p}, v{a}, v{a+1}")
                k.i(f"v_cvt_pk_bf16_f32 v{p+1}, v{a+2}, v{a+3}")
                k.i(f"buffer_store_dwordx2 v[{p}:{p+1}], v{vga}, s[20:23], 0 offen offset:{nt*64+g*16}")
    else:
        rr = xf
        for nt in range(2):
            for g in range(4):
                p = rr + 2 * (4 * nt + g)
                k.i(f"buffer_load_dwordx2 v[{p}:{p+1}], v{vga}, s[24:27], 0 offen offset:{nt*64+g*16}")
        k.i("s_waitcnt vmcnt(0)")
        for nt in range(2):
            for g in range(4):
                a = acc + 16 * nt + 4 * g
                p = pk + 2 * (4 * nt + g)
                r_ = rr + 2 * (4 * nt + g)
                for h in range(2):
                    k.i(f"v_cvt_pk_bf16_f32 v{p+h}, v{a+2*h}, v{a+2*h+1}")
                    k.i(f"v_lshlrev_b32 v{a+2*h}, 16, v{p+h}")
                    k.i(f"v_and_b32 v{a+2*h+1}, 0xffff0000, v{p+h}")
                    k.i(f"v_lshlrev_b32 v{vt}, 16, v{r_+h}")
                    k.i(f"v_and_b32 v{vt2}, 0xffff0000, v{r_+h}")
                    k.i(f"v_add_f32 v{a+2*h}, v{a+2*h}, v{vt}")
                    k.i(f"v_add_f32 v{a+2*h+1}, v{a+2*h+1}, v{vt2}")
                    k.i(f"v_cvt_pk_bf16_f32 v{p+h}, v{a+2*h}, v{a+2*h+1}")
                k.i(f"buffer_store_dwordx2 v[{p}:{p+1}], v{vga}, s[20:23], 0 offen offset:{nt*64+g*16}")
    k.lab("done")
    k.i("s_endpgm")
    return k


def emit(kernels, order, path):
    hdr = []
    for name in order:
        kk = kernels[name]
        hdr.append(f"; @launch kernel={kk.name} grid=({kk.grid},1,1) block=({kk.block},1,1) lds={kk.lds}")
    txt = "\n".join(hdr) + "\n"
    txt += '.amdgcn_target "amdgcn-amd-amdhsa--gfx950"\n.text\n'
    for kk in kernels.values():
        txt += kk.text()
    txt += '.section .rodata,"a"\n.p2align 6\n'
    for kk in kernels.values():
        txt += kk.desc()
    open(path, "w").write(txt)


if __name__ == "__main__":
    ks = {}
    ks["ln1"] = gen_ln("ln1_kernel", "A_x", ("ws", WS_XN))
    ks["qkv1"] = gen_gemm("qkva_kernel", ("ws", WS_XN), "A_wqkv", N3, ("ws", WS_QKV))
    ks["op1"] = gen_gemm("opa1_kernel", ("ws", WS_XN), "A_wo", D, ("ws", WS_X1), res="A_x")
    emit(ks, ["ln1", "qkv1", "op1"], sys.argv[1] if len(sys.argv) > 1 else "t1.s")
```

```python
from gen import *
import math

KSTR = 80
VSTR = 64
KB = 128 * KSTR
VB = 128 * VSTR
ABUF = KB + VB


def gen_attn(name):
    nwg = H * 8
    k = Kern(name, 512, nwg, lds=2 * ABUF)
    k.load_ptr(4, ("ws", WS_QKV))
    k.load_ptr(6, ("ws", WS_O))
    k.i(f"s_cmp_ge_u32 s2, {nwg}")
    k.i(f"s_cbranch_scc1 {k.ref('done')}")
    k.i("s_waitcnt lgkmcnt(0)")
    k.fix_ptr(4, ("ws", WS_QKV))
    k.fix_ptr(6, ("ws", WS_O))
    k.srd(8, 4, S * N3 * 2)
    k.srd(12, 6, XB)
    k.i("s_lshr_b32 s16, s2, 3")
    k.i("s_and_b32 s17, s2, 7")
    k.i("s_mul_i32 s18, s16, 36")
    k.nv = 1
    vt = k.valloc(1); vt2 = k.valloc(1); vt3 = k.valloc(1)
    vgk = k.valloc(1)
    vlk = k.valloc(1)
    vlv = k.valloc(1)
    vkr = k.valloc(1)
    vvr = k.valloc(1)
    vm = k.valloc(1)
    vmc = k.valloc(1)
    st = k.valloc(6, 2)
    qf = k.valloc(8, 4)
    oacc = k.valloc(16, 4)
    sacc = k.valloc(64, 4)
    pp = k.valloc(32, 4)
    kf = k.valloc(32, 4)
    vf = k.valloc(32, 4)
    k.i(f"v_lshrrev_b32 v{vt}, 2, v0")
    k.i(f"v_and_b32 v{vt2}, 3, v0")
    k.i(f"v_mul_u32_u24 v{vlk}, {KSTR}, v{vt}")
    k.i(f"v_lshlrev_b32 v{vt3}, 2, v{vt2}")
    k.i(f"v_add_u32 v{vlk}, v{vlk}, v{vt3}")
    k.i(f"v_lshlrev_b32 v{vlv}, 6, v{vt}")
    k.i(f"v_add_u32 v{vlv}, v{vlv}, v{vt3}")
    k.i(f"v_add_u32 v{vlv}, {KB}, v{vlv}")
    k.i(f"v_mov_b32 v{vm}, 0")
    k.i(f"v_mov_b32 v{vmc}, 0x3f80")
    k.i(f"v_cmp_eq_u32 vcc, 0, v{vt2}")
    k.i("s_nop 1")
    k.i(f"v_cndmask_b32 v{vmc}, v{vm}, v{vmc}, vcc")
    for b in range(2):
        k.i(f"ds_write_b32 v{vlk}, v{vm} offset:{b*ABUF+36}")
        k.i(f"ds_write_b32 v{vlv}, v{vmc} offset:{b*ABUF+36}")
    k.i(f"v_min_u32 v{vt3}, 8, v{vt3}")
    k.i(f"v_mul_u32_u24 v{vt}, {KSTR}, v{vt}")
    k.i(f"v_add_u32 v{vt}, v{vt}, v{vt3}")
    k.i(f"v_lshrrev_b32 v{vt2}, 2, v0")
    k.i(f"v_lshlrev_b32 v{vt2}, 6, v{vt2}")
    k.i(f"v_add_u32 v{vt2}, v{vt2}, v{vt3}")
    for b in range(2):
        k.i(f"ds_write_b32 v{vt}, v{vm} offset:{b*ABUF+52}")
        k.i(f"ds_write_b32 v{vt2}, v{vm} offset:{b*ABUF+KB+52}")
    k.i(f"v_lshrrev_b32 v{vt}, 2, v0")
    k.i(f"v_mul_u32_u24 v{vgk}, 3456, v{vt}")
    k.i(f"v_and_b32 v{vt2}, 3, v0")
    k.i(f"v_lshlrev_b32 v{vt2}, 2, v{vt2}")
    k.i(f"v_add3_u32 v{vgk}, v{vgk}, v{vt2}, s18")
    k.i(f"v_lshrrev_b32 v{vt}, 6, v0")
    k.i(f"v_lshlrev_b32 v{vt}, 5, v{vt}")
    k.i(f"v_and_b32 v{vt2}, 31, v0")
    k.i(f"s_lshl_b32 s19, s17, 8")
    k.i(f"v_add3_u32 v{vt}, v{vt}, v{vt2}, s19")
    k.i(f"v_mul_u32_u24 v{vt3}, 3456, v{vt}")
    k.i(f"v_bfe_u32 v{vt2}, v0, 5, 1")
    k.i(f"v_lshlrev_b32 v{vt2}, 4, v{vt2}")
    k.i(f"v_add3_u32 v{vt3}, v{vt3}, v{vt2}, s18")
    for j in range(4):
        k.i(f"buffer_load_dword v{qf+j}, v{vt3}, s[8:11], 0 offen offset:{4*j}")
    k.i(f"buffer_load_dword v{qf+4}, v{vt3}, s[8:11], 0 offen offset:32")
    for j in range(5, 8):
        k.i(f"v_mov_b32 v{qf+j}, 0")
    vgo = k.valloc(1)
    k.i(f"v_mul_u32_u24 v{vgo}, 1152, v{vt}")
    k.i(f"v_add_u32 v{vgo}, s18, v{vgo}")
    k.i(f"v_and_b32 v{vt}, 31, v0")
    k.i(f"v_mul_u32_u24 v{vkr}, {KSTR}, v{vt}")
    k.i(f"v_bfe_u32 v{vt2}, v0, 5, 1")
    k.i(f"v_lshlrev_b32 v{vt2}, 4, v{vt2}")
    k.i(f"v_add_u32 v{vkr}, v{vkr}, v{vt2}")
    k.i(f"v_bfe_u32 v{vt}, v0, 5, 1")
    k.i(f"v_lshlrev_b32 v{vt}, 2, v{vt}")
    k.i(f"v_bfe_u32 v{vt2}, v0, 2, 2")
    k.i(f"v_add_u32 v{vt}, v{vt}, v{vt2}")
    k.i(f"v_lshlrev_b32 v{vvr}, 6, v{vt}")
    k.i(f"v_bfe_u32 v{vt}, v0, 4, 1")
    k.i(f"v_lshlrev_b32 v{vt}, 5, v{vt}")
    k.i(f"v_and_b32 v{vt2}, 3, v0")
    k.i(f"v_lshlrev_b32 v{vt2}, 3, v{vt2}")
    k.i(f"v_add3_u32 v{vvr}, v{vvr}, v{vt}, v{vt2}")
    k.i(f"v_add_u32 v{vvr}, {KB}, v{vvr}")
    for r in range(16):
        k.i(f"v_mov_b32 v{oacc+r}, 0")
    k.i(f"v_mov_b32 v{vm}, 0xff800000")
    k.i("s_waitcnt vmcnt(0)")
    k.i(f"v_cmp_gt_u32 vcc, 32, v0")
    k.i(f"v_and_b32 v{vt}, 63, v0")
    k.i(f"v_cmp_gt_u32 vcc, 32, v{vt}")
    k.i("s_nop 1")
    k.i(f"v_cndmask_b32 v{qf+4}, 0, v{qf+4}, vcc")
    c = (DH ** -0.5) * math.log2(math.e)
    k.i(f"s_mov_b32 s20, 0x{f2u(c):x}")

    def gload(kt):
        k.i(f"s_mov_b32 s21, 0x{kt*128*3456:x}")
        for j, o in enumerate((1152, 1152 + 16, 1152 + 32, 2304, 2304 + 16, 2304 + 32)):
            if j % 3 == 2:
                k.i(f"buffer_load_dword v{st+j}, v{vg8}, s[8:11], s21 offen offset:{o}")
            else:
                k.i(f"buffer_load_dword v{st+j}, v{vgk}, s[8:11], s21 offen offset:{o}")

    vg8 = k.valloc(1)
    vl8k = k.valloc(1)
    vl8v = k.valloc(1)
    k.i(f"v_and_b32 v{vt}, 3, v0")
    k.i(f"v_lshlrev_b32 v{vt}, 2, v{vt}")
    k.i(f"v_sub_u32 v{vg8}, v{vgk}, v{vt}")
    k.i(f"v_sub_u32 v{vl8k}, v{vlk}, v{vt}")
    k.i(f"v_sub_u32 v{vl8v}, v{vlv}, v{vt}")
    gload(0)
    for kt in range(16):
        b = (kt & 1) * ABUF
        k.i("s_waitcnt vmcnt(0)")
        k.i(f"ds_write_b32 v{vlk}, v{st} offset:{b}")
        k.i(f"ds_write_b32 v{vlk}, v{st+1} offset:{b+16}")
        k.i(f"ds_write_b32 v{vl8k}, v{st+2} offset:{b+32}")
        k.i(f"ds_write_b32 v{vlv}, v{st+3} offset:{b}")
        k.i(f"ds_write_b32 v{vlv}, v{st+4} offset:{b+16}")
        k.i(f"ds_write_b32 v{vl8v}, v{st+5} offset:{b+32}")
        k.i("s_waitcnt lgkmcnt(0)")
        k.i("s_barrier")
        if kt < 15:
            gload(kt + 1)
        for sub in range(4):
            for ks in range(2):
                r = kf + 8 * sub + 4 * ks
                k.i(f"ds_read_b128 v[{r}:{r+3}], v{vkr} offset:{b + sub*32*KSTR + ks*32}")
        for sub in range(4):
            k.i(f"s_waitcnt lgkmcnt({6 - 2*sub})")
            a = sacc + 16 * sub
            r = kf + 8 * sub
            k.i(f"v_mfma_f32_32x32x16_bf16 v[{a}:{a+15}], v[{r}:{r+3}], v[{qf}:{qf+3}], 0")
            k.i(f"v_mfma_f32_32x32x16_bf16 v[{a}:{a+15}], v[{r+4}:{r+7}], v[{qf+4}:{qf+7}], v[{a}:{a+15}]")
        for g in range(8):
            for j in range(2):
                r = vf + 4 * g + 2 * j
                k.i(f"ds_read_b64_tr_b16 v[{r}:{r+1}], v{vvr} offset:{b + (g*16 + 8*j)*VSTR}")
        k.i("s_nop 7")
        k.i("s_nop 3")
        k.i(f"v_max3_f32 v{vt}, v{sacc}, v{sacc+1}, v{sacc+2}")
        for j in range(3, 63, 2):
            k.i(f"v_max3_f32 v{vt}, v{vt}, v{sacc+j}, v{sacc+j+1}")
        k.i(f"v_max_f32 v{vt}, v{vt}, v{sacc+63}")
        k.i(f"v_mov_b32 v{vt2}, v{vt}")
        k.i("s_nop 1")
        k.i(f"v_permlane32_swap_b32 v{vt}, v{vt2}")
        k.i(f"v_max3_f32 v{vt}, v{vt}, v{vt2}, v{vm}")
        k.i(f"v_sub_f32 v{vt2}, v{vm}, v{vt}")
        k.i(f"v_mul_f32 v{vt2}, s20, v{vt2}")
        k.i(f"v_exp_f32 v{vt2}, v{vt2}")
        k.i(f"v_mov_b32 v{vm}, v{vt}")
        k.i(f"v_mul_f32 v{vmc}, s20, v{vt}")
        for r in range(16):
            k.i(f"v_mul_f32 v{oacc+r}, v{oacc+r}, v{vt2}")
        k.i("s_waitcnt lgkmcnt(0)")
        for g in range(8):
            for j in range(8 * g, 8 * g + 8):
                k.i(f"v_fma_f32 v{sacc+j}, v{sacc+j}, s20, -v{vmc}")
            for j in range(8 * g, 8 * g + 8):
                k.i(f"v_exp_f32 v{sacc+j}, v{sacc+j}")
            k.i("s_nop 0")
            for j in range(4 * g, 4 * g + 4):
                k.i(f"v_cvt_pk_bf16_f32 v{pp+j}, v{sacc+2*j}, v{sacc+2*j+1}")
            k.i("s_nop 1")
            r = vf + 4 * g
            p = pp + 4 * g
            k.i(f"v_mfma_f32_32x32x16_bf16 v[{oacc}:{oacc+15}], v[{r}:{r+3}], v[{p}:{p+3}], v[{oacc}:{oacc+15}]")
    k.i("s_nop 7")
    k.i("s_nop 7")
    k.i(f"v_mov_b32 v{vt}, v{oacc+10}")
    k.i(f"v_mov_b32 v{vt2}, v{oacc+10}")
    k.i("s_nop 1")
    k.i(f"v_permlane32_swap_b32 v{vt}, v{vt2}")
    k.i(f"v_rcp_f32 v{vt}, v{vt}")
    k.i("s_nop 0")
    for r in range(10):
        k.i(f"v_mul_f32 v{oacc+r}, v{oacc+r}, v{vt}")
    for r in range(0, 10, 2):
        k.i(f"v_cvt_pk_bf16_f32 v{pp+r//2}, v{oacc+r}, v{oacc+r+1}")
    k.i(f"v_bfe_u32 v{vt2}, v0, 5, 1")
    k.i(f"v_lshlrev_b32 v{vt2}, 3, v{vt2}")
    k.i(f"v_add_u32 v{vgo}, v{vgo}, v{vt2}")
    k.i(f"buffer_store_dword v{pp}, v{vgo}, s[12:15], 0 offen")
    k.i(f"buffer_store_dword v{pp+1}, v{vgo}, s[12:15], 0 offen offset:4")
    k.i(f"buffer_store_dword v{pp+2}, v{vgo}, s[12:15], 0 offen offset:16")
    k.i(f"buffer_store_dword v{pp+3}, v{vgo}, s[12:15], 0 offen offset:20")
    k.i(f"v_and_b32 v{vt}, 63, v0")
    k.i(f"v_cmp_gt_u32 vcc, 32, v{vt}")
    k.i("s_and_saveexec_b64 s[22:23], vcc")
    k.i(f"buffer_store_dword v{pp+4}, v{vgo}, s[12:15], 0 offen offset:32")
    k.i("s_mov_b64 exec, s[22:23]")
    k.lab("done")
    k.i("s_endpgm")
    return k
```

```python
from gen import *
import math
LOG2E = math.log2(math.e)


def emit_wphi_frags(k, wa, vt, vt2, vt3, sh, srd):
    tmp = wa + 8
    k.i(f"v_and_b32 v{vt}, 31, v0")
    k.i(f"v_bfe_u32 v{vt2}, v0, 5, 1")
    k.i(f"v_lshlrev_b32 v{vt2}, 3, v{vt2}")
    k.i(f"s_mul_i32 s40, s{sh}, 648")
    for half in range(2):
        for j in range(8):
            k.i(f"v_add_u32 v{vt3}, {16*half + j}, v{vt2}")
            k.i(f"v_cmp_gt_u32 vcc, 18, v{vt3}")
            k.i(f"v_mul_u32_u24 v{vt3}, 36, v{vt3}")
            k.i(f"v_lshl_add_u32 v{vt3}, v{vt}, 1, v{vt3}")
            k.i(f"v_add_u32 v{vt3}, s40, v{vt3}")
            k.i(f"s_mov_b64 s[42:43], vcc")
            k.i(f"v_cmp_gt_u32 vcc, 18, v{vt}")
            k.i(f"s_and_b64 vcc, vcc, s[42:43]")
            k.i("s_nop 1")
            k.i(f"v_cndmask_b32 v{vt3}, -16, v{vt3}, vcc")
            k.i(f"buffer_load_ushort v{tmp+8*half+j}, v{vt3}, s[{srd}:{srd+3}], 0 offen")
    k.i("s_waitcnt vmcnt(0)")
    for half in range(2):
        for j in range(4):
            k.i(f"v_lshl_or_b32 v{wa+4*half+j}, v{tmp+8*half+2*j+1}, 16, v{tmp+8*half+2*j}")


def emit_dual_softmax(k, pk, ep, em, vt, vt2, vt3, vmask_lo):
    k.i(f"v_cndmask_b32 v{ep}, v{pk}, v{pk+8}, s[{vmask_lo}:{vmask_lo+1}]")
    k.i(f"v_cndmask_b32 v{ep+1}, v{pk}, v{pk+9}, s[{vmask_lo}:{vmask_lo+1}]")
    k.i(f"v_max3_f32 v{vt}, v{ep}, v{ep+1}, v{pk}")
    k.i(f"v_min3_f32 v{vt2}, v{ep}, v{ep+1}, v{pk}")
    for r in range(1, 8, 2):
        if r + 1 < 8:
            k.i(f"v_max3_f32 v{vt}, v{vt}, v{pk+r}, v{pk+r+1}")
            k.i(f"v_min3_f32 v{vt2}, v{vt2}, v{pk+r}, v{pk+r+1}")
        else:
            k.i(f"v_max_f32 v{vt}, v{vt}, v{pk+r}")
            k.i(f"v_min_f32 v{vt2}, v{vt2}, v{pk+r}")
    k.i(f"v_mov_b32 v{ep}, v{vt}")
    k.i(f"v_mov_b32 v{ep+1}, v{vt2}")
    k.i("s_nop 1")
    k.i(f"v_permlane32_swap_b32 v{vt}, v{ep}")
    k.i(f"v_permlane32_swap_b32 v{vt2}, v{ep+1}")
    k.i(f"v_max_f32 v{vt}, v{vt}, v{ep}")
    k.i(f"v_min_f32 v{vt2}, v{vt2}, v{ep+1}")
    k.i(f"s_mov_b32 s44, 0x{f2u(LOG2E):x}")
    for r in range(10):
        k.i(f"v_sub_f32 v{ep+r}, v{pk+r}, v{vt}")
        k.i(f"v_sub_f32 v{em+r}, v{vt2}, v{pk+r}")
        k.i(f"v_mul_f32 v{ep+r}, s44, v{ep+r}")
        k.i(f"v_mul_f32 v{em+r}, s44, v{em+r}")
        k.i(f"v_exp_f32 v{ep+r}, v{ep+r}")
        k.i(f"v_exp_f32 v{em+r}, v{em+r}")
    k.i("s_nop 0")
    for r in (8, 9):
        k.i(f"v_cndmask_b32 v{ep+r}, 0, v{ep+r}, s[{vmask_lo}:{vmask_lo+1}]")
        k.i(f"v_cndmask_b32 v{em+r}, 0, v{em+r}, s[{vmask_lo}:{vmask_lo+1}]")
    k.i(f"v_add_f32 v{vt}, v{ep}, v{ep+1}")
    k.i(f"v_add_f32 v{vt2}, v{em}, v{em+1}")
    for r in range(2, 10):
        k.i(f"v_add_f32 v{vt}, v{vt}, v{ep+r}")
        k.i(f"v_add_f32 v{vt2}, v{vt2}, v{em+r}")
    k.i(f"v_mov_b32 v{vt3}, v{vt}")
    k.i(f"v_mov_b32 v{pk}, v{vt2}")
    k.i("s_nop 1")
    k.i(f"v_permlane32_swap_b32 v{vt}, v{vt3}")
    k.i(f"v_permlane32_swap_b32 v{vt2}, v{pk}")
    k.i(f"v_add_f32 v{vt}, v{vt}, v{vt3}")
    k.i(f"v_add_f32 v{vt2}, v{vt2}, v{pk}")
    k.i(f"v_rcp_f32 v{vt}, v{vt}")
    k.i(f"v_rcp_f32 v{vt2}, v{vt2}")
    k.i("s_nop 0")
    for r in range(10):
        k.i(f"v_mul_f32 v{ep+r}, v{ep+r}, v{vt}")
        k.i(f"v_mul_f32 v{em+r}, v{em+r}, v{vt2}")


PSTR = 192
PHB = 32 * PSTR
VTB = 32 * 64
WVB = PHB + VTB


def gen_kvred(name):
    k = Kern(name, 512, H * 8, lds=8 * WVB)
    k.load_ptr(4, ("ws", WS_QKV))
    k.i(f"s_load_dwordx2 s[6:7], s[0:1], {KA['A_wphi']}")
    k.load_ptr(8, ("ws", WS_KV))
    k.i(f"s_cmp_ge_u32 s2, {H*8}")
    k.i(f"s_cbranch_scc1 {k.ref('done')}")
    k.i("s_waitcnt lgkmcnt(0)")
    k.fix_ptr(4, ("ws", WS_QKV))
    k.fix_ptr(8, ("ws", WS_KV))
    k.srd(12, 4, S * N3 * 2)
    k.srd(20, 8, H * 8 * 8192)
    k.i("s_lshr_b32 s46, s2, 3")
    k.i("s_and_b32 s47, s2, 7")
    k.i("s_mul_i32 s24, s46, 36")
    k.srd(16, 6, H * 648)
    k.nv = 1
    vt = k.valloc(1); vt2 = k.valloc(1); vt3 = k.valloc(1)
    vgk = k.valloc(1); vlb = k.valloc(1); vlp = k.valloc(1); vpr = k.valloc(1); vvr = k.valloc(1); vlv = k.valloc(1)
    wa = k.valloc(24, 4)
    kb = k.valloc(8, 4)
    vs = k.valloc(8, 4)
    pk = k.valloc(16, 4)
    ep = k.valloc(10, 2); em = k.valloc(10, 2)
    af = k.valloc(8, 4); bfv = k.valloc(4, 4)
    acc = k.valloc(32, 4)
    emit_wphi_frags(k, wa, vt, vt2, vt3, 46, 16)
    k.i(f"v_and_b32 v{vt}, 63, v0")
    k.i(f"v_cmp_gt_u32 s[26:27], 32, v{vt}")
    k.i(f"v_lshrrev_b32 v{vlb}, 6, v0")
    k.i(f"v_mul_u32_u24 v{vlb}, {WVB}, v{vlb}")
    k.i(f"v_mov_b32 v{pk}, 0"); k.i(f"v_mov_b32 v{pk+1}, 0"); k.i(f"v_mov_b32 v{pk+2}, 0"); k.i(f"v_mov_b32 v{pk+3}, 0")
    k.i(f"v_lshlrev_b32 v{vt2}, 4, v{vt}")
    k.i(f"v_add_u32 v{vt2}, v{vt2}, v{vlb}")
    for j in range(8):
        k.i(f"ds_write_b128 v{vt2}, v[{pk}:{pk+3}] offset:{j*1024}")
    k.i("s_waitcnt lgkmcnt(0)")
    k.i(f"v_and_b32 v{vt2}, 31, v0")
    k.i(f"v_lshlrev_b32 v{vt2}, 6, v{vt2}")
    k.i(f"v_add_u32 v{vt2}, v{vt2}, v{vlb}")
    k.i(f"v_mov_b32 v{vt3}, 0x3f80")
    k.i(f"ds_write_b32 v{vt2}, v{vt3} offset:{PHB + 36}")
    k.i(f"v_lshrrev_b32 v{vt2}, 6, v0")
    k.i(f"v_lshlrev_b32 v{vt2}, 5, v{vt2}")
    k.i(f"v_and_b32 v{vt3}, 31, v0")
    k.i("s_lshl_b32 s48, s47, 8")
    k.i(f"v_add3_u32 v{vt2}, v{vt2}, v{vt3}, s48")
    k.i(f"v_mul_u32_u24 v{vgk}, 3456, v{vt2}")
    k.i(f"v_bfe_u32 v{vt3}, v0, 5, 1")
    k.i(f"v_lshlrev_b32 v{vt3}, 4, v{vt3}")
    k.i(f"v_add3_u32 v{vgk}, v{vgk}, v{vt3}, s24")
    k.i(f"v_and_b32 v{vt2}, 31, v0")
    k.i(f"v_mul_u32_u24 v{vlp}, {PSTR}, v{vt2}")
    k.i(f"v_bfe_u32 v{vt3}, v0, 5, 1")
    k.i(f"v_lshlrev_b32 v{vt3}, 3, v{vt3}")
    k.i(f"v_add3_u32 v{vlp}, v{vlp}, v{vt3}, v{vlb}")
    k.i(f"v_lshlrev_b32 v{vlv}, 6, v{vt2}")
    k.i(f"v_lshlrev_b32 v{vt3}, 1, v{vt3}")
    k.i(f"v_add3_u32 v{vlv}, v{vlv}, v{vt3}, v{vlb}")
    k.i(f"v_bfe_u32 v{vt}, v0, 5, 1")
    k.i(f"v_lshlrev_b32 v{vt}, 3, v{vt}")
    k.i(f"v_bfe_u32 v{vt2}, v0, 2, 2")
    k.i(f"v_add_u32 v{vt}, v{vt}, v{vt2}")
    k.i(f"v_bfe_u32 v{vt2}, v0, 4, 1")
    k.i(f"v_lshlrev_b32 v{vt2}, 5, v{vt2}")
    k.i(f"v_and_b32 v{vt3}, 3, v0")
    k.i(f"v_lshlrev_b32 v{vt3}, 3, v{vt3}")
    k.i(f"v_add_u32 v{vt2}, v{vt2}, v{vt3}")
    k.i(f"v_mul_u32_u24 v{vpr}, {PSTR}, v{vt}")
    k.i(f"v_add3_u32 v{vpr}, v{vpr}, v{vt2}, v{vlb}")
    k.i(f"v_lshlrev_b32 v{vvr}, 6, v{vt}")
    k.i(f"v_add3_u32 v{vvr}, v{vvr}, v{vt2}, v{vlb}")
    for r in range(32):
        k.i(f"v_mov_b32 v{acc+r}, 0")
    for r in range(5, 8):
        k.i(f"v_mov_b32 v{kb+r}, 0")
    for g in range(1):
        so = g * 32 * 3456
        k.i(f"s_mov_b32 s28, 0x{so:x}")
        for j in range(4):
            k.i(f"buffer_load_dword v{kb+j}, v{vgk}, s[12:15], s28 offen offset:{1152+4*j}")
        k.i(f"buffer_load_dword v{kb+4}, v{vgk}, s[12:15], s28 offen offset:{1152+32}")
        for j in range(4):
            k.i(f"buffer_load_dword v{vs+j}, v{vgk}, s[12:15], s28 offen offset:{2304+4*j}")
        k.i(f"buffer_load_dword v{vs+4}, v{vgk}, s[12:15], s28 offen offset:{2304+32}")
        k.i("s_waitcnt vmcnt(0)")
        k.i(f"v_cndmask_b32 v{kb+4}, 0, v{kb+4}, s[26:27]")
        k.i(f"ds_write_b128 v{vlv}, v[{vs}:{vs+3}] offset:{PHB}")
        k.i(f"s_mov_b64 s[30:31], exec")
        k.i(f"s_mov_b64 exec, s[26:27]")
        k.i(f"ds_write_b32 v{vlv}, v{vs+4} offset:{PHB+32}")
        k.i(f"s_mov_b64 exec, s[30:31]")
        k.i("s_nop 1")
        k.i(f"v_mfma_f32_32x32x16_bf16 v[{pk}:{pk+15}], v[{wa}:{wa+3}], v[{kb}:{kb+3}], 0")
        k.i(f"v_mfma_f32_32x32x16_bf16 v[{pk}:{pk+15}], v[{wa+4}:{wa+7}], v[{kb+4}:{kb+7}], v[{pk}:{pk+15}]")
        k.i("s_nop 7"); k.i("s_nop 3")
        emit_dual_softmax(k, pk, ep, em, vt, vt2, vt3, 26)
        for ft, e in ((0, ep), (1, em)):
            for r in range(0, 10, 2):
                k.i(f"v_cvt_pk_bf16_f32 v{pk+r//2}, v{e+r}, v{e+r+1}")
            for r in range(0, 10, 2):
                fo = (8 * (r // 4) + r % 4) * 2
                k.i(f"ds_write_b32 v{vlp}, v{pk+r//2} offset:{ft*64 + fo}")
        k.i("s_waitcnt lgkmcnt(0)")
        for ks in range(2):
            for j in range(2):
                k.i(f"ds_read_b64_tr_b16 v[{bfv+2*j}:{bfv+2*j+1}], v{vvr} offset:{PHB + (ks*16+4*j)*64}")
            for ft in range(2):
                for j in range(2):
                    k.i(f"ds_read_b64_tr_b16 v[{af+4*ft+2*j}:{af+4*ft+2*j+1}], v{vpr} offset:{(ks*16+4*j)*PSTR + ft*64}")
            k.i("s_waitcnt lgkmcnt(0)")
            for ft in range(2):
                a = acc + 16 * ft
                k.i(f"v_mfma_f32_32x32x16_bf16 v[{a}:{a+15}], v[{af+4*ft}:{af+4*ft+3}], v[{bfv}:{bfv+3}], v[{a}:{a+15}]")
            k.i("s_nop 7"); k.i("s_nop 3")
    k.i("s_nop 7"); k.i("s_nop 7")
    k.i("s_barrier")
    k.i(f"v_and_b32 v{vt}, 63, v0")
    k.i(f"v_lshlrev_b32 v{vt}, 2, v{vt}")
    k.i(f"v_add_u32 v{vt2}, v{vt}, v{vlb}")
    for r in range(32):
        k.i(f"ds_write_b32 v{vt2}, v{acc+r} offset:{r*256}")
    k.i("s_waitcnt lgkmcnt(0)")
    k.i("s_barrier")
    k.i(f"v_cmp_gt_u32 vcc, 64, v0")
    k.i("s_and_saveexec_b64 s[30:31], vcc")
    k.i(f"s_cbranch_execz {k.ref('done')}")
    tmp = wa
    for r in range(32):
        for w in range(1, 8):
            k.i(f"ds_read_b32 v{tmp+w}, v{vt} offset:{w*WVB + r*256}")
        k.i("s_waitcnt lgkmcnt(0)")
        for w in range(1, 8):
            k.i(f"v_add_f32 v{acc+r}, v{acc+r}, v{tmp+w}")
    k.i(f"v_lshlrev_b32 v{vt}, 4, v0")
    k.i("s_lshl_b32 s28, s2, 13")
    for q in range(8):
        if q == 4:
            k.i(f"v_add_u32 v{vt}, 0x1000, v{vt}")
        k.i(f"buffer_store_dwordx4 v[{acc+4*q}:{acc+4*q+3}], v{vt}, s[20:23], s28 offen offset:{(q%4)*1024}")
    k.lab("done")
    k.i("s_endpgm")
    return k


def gen_apply(name):
    nwg = H * 16
    k = Kern(name, 256, nwg, lds=32768)
    k.load_ptr(4, ("ws", WS_QKV))
    k.i(f"s_load_dwordx2 s[6:7], s[0:1], {KA['A_wphi']}")
    k.load_ptr(8, ("ws", WS_KV))
    k.load_ptr(10, ("ws", WS_O))
    k.i(f"s_cmp_ge_u32 s2, {nwg}")
    k.i(f"s_cbranch_scc1 {k.ref('done')}")
    k.i("s_waitcnt lgkmcnt(0)")
    k.fix_ptr(4, ("ws", WS_QKV))
    k.fix_ptr(8, ("ws", WS_KV))
    k.fix_ptr(10, ("ws", WS_O))
    k.srd(12, 4, S * N3 * 2)
    k.srd(16, 6, H * 648)
    k.srd(20, 8, H * 8 * 8192)
    k.srd(28, 10, XB)
    k.i("s_lshr_b32 s32, s2, 4")
    k.i("s_and_b32 s33, s2, 15")
    k.i("s_mul_i32 s24, s32, 36")
    k.nv = 1
    vt = k.valloc(1); vt2 = k.valloc(1); vt3 = k.valloc(1); vgq = k.valloc(1); vgo = k.valloc(1)
    wa = k.valloc(24, 4)
    qb = k.valloc(8, 4)
    pk = k.valloc(16, 4)
    ep = k.valloc(10, 2); em = k.valloc(10, 2)
    kva = k.valloc(16, 4)
    pb = k.valloc(16, 4)
    acc = k.valloc(16, 4)
    emit_wphi_frags(k, wa, vt, vt2, vt3, 32, 16)
    k.i(f"v_and_b32 v{vt}, 63, v0")
    k.i(f"v_cmp_gt_u32 s[26:27], 32, v{vt}")
    k.i(f"v_lshrrev_b32 v{vt2}, 6, v0")
    k.i(f"v_lshlrev_b32 v{vt2}, 5, v{vt2}")
    k.i(f"v_and_b32 v{vt3}, 31, v0")
    k.i("s_lshl_b32 s34, s33, 7")
    k.i(f"v_add3_u32 v{vt2}, v{vt2}, v{vt3}, s34")
    k.i(f"v_mul_u32_u24 v{vgq}, 3456, v{vt2}")
    k.i(f"v_bfe_u32 v{vt3}, v0, 5, 1")
    k.i(f"v_lshlrev_b32 v{vt3}, 4, v{vt3}")
    k.i(f"v_add3_u32 v{vgq}, v{vgq}, v{vt3}, s24")
    k.i(f"v_mul_u32_u24 v{vgo}, 1152, v{vt2}")
    k.i(f"v_lshrrev_b32 v{vt3}, 1, v{vt3}")
    k.i(f"v_add3_u32 v{vgo}, v{vgo}, v{vt3}, s24")
    for j in range(4):
        k.i(f"buffer_load_dword v{qb+j}, v{vgq}, s[12:15], 0 offen offset:{4*j}")
    k.i(f"buffer_load_dword v{qb+4}, v{vgq}, s[12:15], 0 offen offset:32")
    for j in range(5, 8):
        k.i(f"v_mov_b32 v{qb+j}, 0")
    k.i(f"v_lshlrev_b32 v{vt}, 4, v{vt}")
    k.i("s_lshl_b32 s35, s32, 16")
    k.i(f"v_add_u32 v{vt2}, 0x1000, v{vt}")
    kp = k.valloc(64, 4)
    vl = k.valloc(1); vl2 = k.valloc(1)
    k.i(f"v_lshrrev_b32 v{vl}, 6, v0")
    k.i(f"v_lshlrev_b32 v{vl}, 14, v{vl}")
    k.i(f"v_add_u32 v{vt}, v{vt}, v{vl}")
    k.i(f"v_add_u32 v{vt2}, v{vt2}, v{vl}")
    for c in range(2):
        dst = kp if c == 0 else kp + 32
        for q in range(8):
            k.i(f"buffer_load_dwordx4 v[{dst+4*q}:{dst+4*q+3}], v{vt if q < 4 else vt2}, s[20:23], s35 offen offset:{(q%4)*1024}")
        k.i("s_add_u32 s35, s35, 0x2000")
    k.i("s_waitcnt vmcnt(0)")
    for r in range(32):
        k.i(f"v_add_f32 v{kp+r}, v{kp+r}, v{kp+32+r}")
    k.i(f"v_and_b32 v{vl2}, 63, v0")
    k.i(f"v_lshlrev_b32 v{vl2}, 4, v{vl2}")
    k.i(f"v_lshrrev_b32 v{vl}, 1, v{vl}")
    k.i(f"v_add_u32 v{vl}, v{vl}, v{vl2}")
    for q in range(8):
        k.i(f"ds_write_b128 v{vl}, v[{kp+4*q}:{kp+4*q+3}] offset:{q*1024}")
    k.i("s_waitcnt lgkmcnt(0)")
    k.i("s_barrier")
    for w in range(4):
        dst = kp if w == 0 else kp + 32
        for q in range(8):
            k.i(f"ds_read_b128 v[{dst+4*q}:{dst+4*q+3}], v{vl2} offset:{w*8192+q*1024}")
        k.i("s_waitcnt lgkmcnt(0)")
        if w:
            for r in range(32):
                k.i(f"v_add_f32 v{kp+r}, v{kp+r}, v{kp+32+r}")
    for j in range(16):
        k.i(f"v_cvt_pk_bf16_f32 v{kva+j}, v{kp+2*j}, v{kp+2*j+1}")
    k.i(f"v_cndmask_b32 v{qb+4}, 0, v{qb+4}, s[26:27]")
    k.i("s_nop 1")
    k.i(f"v_mfma_f32_32x32x16_bf16 v[{pk}:{pk+15}], v[{wa}:{wa+3}], v[{qb}:{qb+3}], 0")
    k.i(f"v_mfma_f32_32x32x16_bf16 v[{pk}:{pk+15}], v[{wa+4}:{wa+7}], v[{qb+4}:{qb+7}], v[{pk}:{pk+15}]")
    k.i("s_nop 7"); k.i("s_nop 3")
    emit_dual_softmax(k, pk, ep, em, vt, vt2, vt3, 26)
    for ft, e in ((0, ep), (1, em)):
        for j in range(5):
            k.i(f"v_cvt_pk_bf16_f32 v{pb+8*ft+j}, v{e+2*j}, v{e+2*j+1}")
        for j in range(5, 8):
            k.i(f"v_mov_b32 v{pb+8*ft+j}, 0")
    k.i("s_waitcnt vmcnt(0)")
    k.i("s_nop 1")
    first = True
    for ft in range(2):
        for ks in range(2):
            a = kva + 4 * (2 * ft + ks)
            b = pb + 8 * ft + 4 * ks
            c = "0" if first else f"v[{acc}:{acc+15}]"
            k.i(f"v_mfma_f32_32x32x16_bf16 v[{acc}:{acc+15}], v[{a}:{a+3}], v[{b}:{b+3}], {c}")
            first = False
    k.i("s_nop 7"); k.i("s_nop 7")
    k.i(f"v_add_f32 v{vt}, 0x{f2u(1e-6):x}, v{acc+10}")
    k.i(f"v_mov_b32 v{vt2}, v{vt}")
    k.i("s_nop 1")
    k.i(f"v_permlane32_swap_b32 v{vt}, v{vt2}")
    k.i(f"v_rcp_f32 v{vt}, v{vt}")
    k.i("s_nop 0")
    for r in range(10):
        k.i(f"v_mul_f32 v{acc+r}, v{acc+r}, v{vt}")
    for r in range(0, 10, 2):
        k.i(f"v_cvt_pk_bf16_f32 v{pk+r//2}, v{acc+r}, v{acc+r+1}")
    k.i(f"buffer_store_dword v{pk}, v{vgo}, s[28:31], 0 offen")
    k.i(f"buffer_store_dword v{pk+1}, v{vgo}, s[28:31], 0 offen offset:4")
    k.i(f"buffer_store_dword v{pk+2}, v{vgo}, s[28:31], 0 offen offset:16")
    k.i(f"buffer_store_dword v{pk+3}, v{vgo}, s[28:31], 0 offen offset:20")
    k.i("s_mov_b64 exec, s[26:27]")
    k.i(f"buffer_store_dword v{pk+4}, v{vgo}, s[28:31], 0 offen offset:32")
    k.lab("done")
    k.i("s_endpgm")
    return k
```
